```python
import torch

def _softmax(x, axis=-1):
    return torch.softmax(x, dim=axis)
def _gelu(x):
    return torch.nn.functional.gelu(x, approximate="tanh")
def _silu(x):
    return torch.nn.functional.silu(x)
def _sigmoid(x):
    return torch.sigmoid(x)
def _layernorm(x, axis=-1, eps=1e-5):
    m = x.mean(dim=axis, keepdim=True)
    v = x.var(dim=axis, keepdim=True, unbiased=False)
    return (x - m) / torch.sqrt(v + eps)
def _scatter_add(tgt, idx, src, axis=0):
    return tgt.clone().index_add_(axis, idx, src)
def _segment_sum(src, seg, n):
    out = torch.zeros((n,) + src.shape[1:], dtype=src.dtype)
    return out.index_add_(0, seg, src)
def _pad(x, pw):
    flat = tuple(v for pair in reversed(pw) for v in pair)
    return torch.nn.functional.pad(x, flat)

kernel_name = 'gated_mix__sliding_block__mixer_channel_mlp__prompt'

def setup_inputs():

    _w = (lambda a: (lambda t: t.to(torch.bfloat16) if t.is_floating_point() else t)(torch.as_tensor(a)))
    def _A_setup():
        B, S, D = 1, 2048, 576
        return {
            "x": _w((lambda *s: torch.randn(*s, dtype=torch.bfloat16) * 0.05)(B, S, D)),
            "wqkv": _w((lambda *s: torch.randn(*s, dtype=torch.bfloat16) * 0.8)(D, 3 * D)),
            "wo": _w((lambda *s: torch.randn(*s, dtype=torch.bfloat16) * 0.05)(D, D)),
        }
    _A_in = _A_setup()

    def _B_setup():
        B, S, D, F = 1, 2048, 576, 4608
        return {
            "x": _w((lambda *s: torch.randn(*s, dtype=torch.bfloat16) * 0.05)(B, S, D)),
            "w1": _w((lambda *s: torch.randn(*s, dtype=torch.bfloat16) * 3.2)(D, F) * (D ** -0.5)),
            "b1": _w((lambda *s: torch.randn(*s, dtype=torch.bfloat16) * 1.6)(F)),
            "w2": _w((lambda *s: torch.randn(*s, dtype=torch.bfloat16) * 0.1)(F, D) * (F ** -0.5)),
            "b2": _w((lambda *s: torch.randn(*s, dtype=torch.bfloat16) * 0.2)(D)),
        }
    _B_in = _B_setup()

    return {
        "A_x": _A_in["x"],
        "A_wqkv": _A_in["wqkv"],
        "A_wo": _A_in["wo"],
        "B_x": _B_in["x"],
        "B_w1": _B_in["w1"],
        "B_b1": _B_in["b1"],
        "B_w2": _B_in["w2"],
        "B_b2": _B_in["b2"],
        "gate_w": _w((lambda *s: torch.randn(*s, dtype=torch.bfloat16) * 0.05)(576) * 16.0),
    }

def reference(A_x, A_wqkv, A_wo, B_x, B_w1, B_b1, B_w2, B_b2, gate_w):
    def _A_ref(x, wqkv, wo):
        B, S, D = x.shape
        H = 32; Dh = D // H; W = 256
        qkv = (lambda x, *d: x.permute(*d))((x @ wqkv).reshape(B, S, 3, H, Dh), 2, 0, 3, 1, 4)
        q, k, v = qkv[0], qkv[1], qkv[2]
        scores = torch.einsum("bhqd,bhkd->bhqk", q, k) * (Dh ** -0.5)
        idx = torch.arange(S)
        mask = (idx[:, None] - idx[None, :] >= 0) & (idx[:, None] - idx[None, :] < W)
        scores = torch.where(mask[None, None], scores, -1e9)
        p = _softmax(scores, axis=-1)
        o = torch.einsum("bhqk,bhkd->bhqd", p, v)
        return (lambda x, *d: x.permute(*d))(o, 0, 2, 1, 3).reshape(B, S, D) @ wo

    def _B_ref(x, w1, b1, w2, b2):
        y = _layernorm(x, axis=-1)
        h = _gelu(torch.einsum("bsd,df->bsf", y, w1) + b1)
        return torch.einsum("bsf,fd->bsd", h, w2) + b2

    x = A_x
    g = _sigmoid((x * gate_w).sum(-1, keepdims=True))
    a = _A_ref(x, A_wqkv, A_wo)
    b = _B_ref(x, B_w1, B_b1, B_w2, B_b2)
    return g * a + (1 - g) * b
```

```python
import re, copy

TRANS = ("v_exp_f32", "v_log_f32", "v_rcp_f32", "v_rsq_f32", "v_sqrt_f32", "v_sin_f32", "v_cos_f32")
_REG = re.compile(r"^(-|abs\()?([vsa])(?:(\d+)|\[(\d+):(\d+)\])\)?$")


def regs_of(tok):
    tok = tok.strip()
    if tok in ("vcc", "exec"):
        return [(tok, 0), (tok, 1)]
    if tok in ("vcc_lo", "exec_lo"):
        return [(tok[:-3], 0)]
    if tok in ("vcc_hi", "exec_hi"):
        return [(tok[:-3], 1)]
    if tok == "m0":
        return [("m0", 0)]
    m = _REG.match(tok)
    if not m:
        return []
    k = m.group(2)
    if m.group(3) is not None:
        return [(k, int(m.group(3)))]
    return [(k, i) for i in range(int(m.group(4)), int(m.group(5)) + 1)]


class Ins:
    __slots__ = ("text", "op", "args", "mods", "defs", "uses", "kind", "tag", "cost", "srcc", "cnt")

    def __init__(self, text, tag=None):
        self.text = text
        self.tag = tag
        self.srcc = []
        self.cnt = 1
        t = text.split(";")[0].strip()
        if t.endswith(":") or t.startswith("."):
            self.op, self.args, self.mods = t, [], []
            self.defs, self.uses, self.kind, self.cost = [], [], "label", 0
            return
        parts = t.split(None, 1)
        op = parts[0]
        rest = parts[1] if len(parts) > 1 else ""
        args = []
        depth = 0
        cur = ""
        for ch in rest:
            if ch in "[(":
                depth += 1
            if ch in "])":
                depth -= 1
            if ch == "," and depth == 0:
                args.append(cur.strip())
                cur = ""
            else:
                cur += ch
        mods = []
        if cur.strip():
            toks = cur.strip().split()
            args.append(toks[0])
            mods = toks[1:]
        self.op, self.args, self.mods = op, args, mods
        R = regs_of
        defs, uses, kind, cost = [], [], None, 4
        if op.startswith("v_mfma"):
            defs = R(args[0])
            uses = R(args[1]) + R(args[2]) + R(args[3])
            self.srcc = R(args[3])
            kind = "mfma8" if "32x32" in op else "mfma4"
            cost = 8
        elif op.startswith("v_permlane") and "swap" in op:
            defs = R(args[0]) + R(args[1])
            uses = list(defs)
            kind = "perm"
        elif op.startswith("v_cmp"):
            defs = R(args[0])
            uses = sum((R(a) for a in args[1:]), [])
            kind = "valu"
        elif op.startswith("v_readfirstlane") or op.startswith("v_readlane"):
            defs = R(args[0])
            uses = sum((R(a) for a in args[1:]), [])
            kind = "rdlane"
        elif op.startswith("v_"):
            defs = R(args[0])
            uses = sum((R(a) for a in args[1:]), [])
            if op.startswith(("v_fmac", "v_dot2c", "v_writelane")):
                uses += defs
            if op.startswith(("v_add_co", "v_sub_co", "v_addc_co", "v_subb_co", "v_mad_u64")):
                defs = defs + R(args[1])
            base = op.replace("_e32", "").replace("_e64", "")
            kind = "trans" if base in TRANS else "valu"
            if kind == "trans":
                cost = 8
            if any(m.startswith(("quad_perm", "row_", "wave_")) for m in mods):
                kind = "dpp"
        elif op.startswith("buffer_load") or op.startswith("global_load"):
            if "lds" in mods or "_lds_" in op:
                uses = sum((R(a) for a in args), []) + [("m0", 0)]
                kind = "dma"
            else:
                defs = R(args[0])
                uses = sum((R(a) for a in args[1:]), [])
                kind = "vload"
        elif op.startswith("buffer_store") or op.startswith("global_store"):
            uses = sum((R(a) for a in args), [])
            kind = "vstore"
        elif op.startswith("buffer_atomic") or op.startswith("global_atomic"):
            uses = sum((R(a) for a in args), [])
            kind = "vstore"
            if "sc0" in mods:
                raise NotImplementedError("returning atomics")
        elif op.startswith(("buffer_inv", "buffer_wbl2")):
            kind = "vstore"
        elif op.startswith("ds_read") or op.startswith("ds_bpermute") or op.startswith("ds_swizzle"):
            defs = R(args[0])
            uses = sum((R(a) for a in args[1:]), [])
            kind = "dsread"
        elif op.startswith("ds_"):
            uses = sum((R(a) for a in args), [])
            kind = "dswrite"
        elif op.startswith("s_load") or op.startswith("s_memtime") or op.startswith("s_memrealtime"):
            defs = R(args[0])
            uses = sum((R(a) for a in args[1:]), [])
            kind = "smem"
        elif op == "s_waitcnt":
            kind = "wait"
        elif op == "s_nop":
            kind = "nop"
            self.cnt = int(args[0], 0) + 1
        elif op == "s_barrier":
            kind = "barrier"
        elif op.startswith(("s_branch", "s_cbranch", "s_endpgm", "s_setpc")):
            kind = "branch"
        elif op.startswith(("s_cmp", "s_bitcmp", "s_setprio", "s_sleep")):
            uses = sum((R(a) for a in args), [])
            kind = "salu"
        elif op.startswith("s_"):
            defs = R(args[0])
            uses = sum((R(a) for a in args[1:]), [])
            if "saveexec" in op:
                defs = defs + [("exec", 0), ("exec", 1)]
            if op.startswith(("s_addk", "s_mulk")):
                uses += defs
            kind = "salu"
        else:
            raise ValueError("unknown op " + text)
        if tag == "PF":
            defs, kind = [], "dma"
        self.defs, self.uses, self.kind, self.cost = defs, uses, kind, cost

    def store_data(self):
        if self.kind != "vstore":
            return []
        if not (self.op.endswith("x4") or self.op.endswith("x3")):
            return []
        return regs_of(self.args[0] if self.op.startswith("buffer") else self.args[1])


VALUK = ("valu", "trans", "perm", "rdlane", "dpp")
MEMK = ("vload", "vstore", "dma", "dsread", "dswrite")


class State:
    def __init__(self):
        self.pos = 0
        self.valu_w = {}
        self.trans_w = {}
        self.mf_w = {}
        self.mf_c = {}
        self.st_d = {}
        self.dot_w = {}
        self.m0_w = -100
        self.vm = []
        self.lg = []
        self.smem_out = False

    def clone(self):
        return copy.copy_state(self) if hasattr(copy, "copy_state") else self._clone()

    def _clone(self):
        s = State()
        s.pos = self.pos
        s.valu_w = dict(self.valu_w)
        s.trans_w = dict(self.trans_w)
        s.mf_w = dict(self.mf_w)
        s.mf_c = dict(self.mf_c)
        s.st_d = dict(self.st_d)
        s.dot_w = dict(self.dot_w)
        s.m0_w = self.m0_w
        s.vm = list(self.vm)
        s.lg = list(self.lg)
        s.smem_out = self.smem_out
        return s


class Asm:
    def __init__(self):
        self.out = []
        self.st = State()
        self.stats = {"nop": 0, "wait": 0, "n": 0}

    def save(self):
        return self.st._clone()

    def restore(self, st):
        self.st = st._clone()

    def raw(self, line):
        self.out.append(line)

    def comment(self, c):
        self.out.append("    ; " + c)

    def label(self, name):
        self.out.append(name + ":")

    def _emit_plain(self, text, cnt=1):
        self.out.append("    " + text)
        self.st.pos += cnt
        self.stats["n"] += 1

    def nop(self, n):
        while n > 0:
            k = min(n, 16)
            self._emit_plain(f"s_nop {k-1}", k)
            self.stats["nop"] += 1
            n -= k

    def waitcnt(self, vm=None, lg=None):
        st = self.st
        parts = []
        if vm is not None:
            vm = min(vm, 63)
            if len(st.vm) > vm:
                parts.append(f"vmcnt({vm})")
                st.vm = st.vm[len(st.vm) - vm:] if vm > 0 else []
        if lg is not None:
            if st.smem_out:
                lg = 0
            lg = min(lg, 15)
            if len(st.lg) > lg:
                parts.append(f"lgkmcnt({lg})")
                st.lg = st.lg[len(st.lg) - lg:] if lg > 0 else []
                if lg == 0:
                    st.smem_out = False
        if parts:
            self._emit_plain("s_waitcnt " + " ".join(parts))
            self.stats["wait"] += 1

    def wait_tag(self, tag, want_lg=False):
        st = self.st
        last = -1
        for i, x in enumerate(st.vm):
            if x.tag == tag:
                last = i
        vm = len(st.vm) - 1 - last if last >= 0 else None
        lg = None
        if want_lg:
            lg = 0
        self.waitcnt(vm=vm, lg=lg)

    def wait_all(self):
        self.waitcnt(vm=0, lg=0)

    def fence(self):
        self._emit_plain("s_waitcnt vmcnt(0) lgkmcnt(0)")
        self.st.vm = []
        self.st.lg = []
        self.st.smem_out = False
        self.nop(12)

    def __call__(self, text, tag=None):
        ins = text if isinstance(text, Ins) else Ins(text, tag)
        if ins.kind == "label":
            self.out.append(ins.text)
            return ins
        if ins.kind == "wait":
            raise ValueError("use waitcnt()/wait_tag()")
        st = self.st
        touched = set(ins.defs) | set(ins.uses)
        vmw = None
        for i, x in enumerate(st.vm):
            if x.kind == "vload" and touched & set(x.defs):
                vmw = len(st.vm) - 1 - i
        lgw = None
        for i, x in enumerate(st.lg):
            if x.defs and touched & set(x.defs):
                lgw = len(st.lg) - 1 - i
        if vmw is not None or lgw is not None:
            self.waitcnt(vm=vmw, lg=lgw)
        need = 0

        def req(prodpos, n):
            nonlocal need
            gap = st.pos - prodpos - 1
            if n - gap > need:
                need = n - gap

        k = ins.kind
        ismf = k in ("mfma8", "mfma4")
        isvalu = k in VALUK
        for r in ins.uses:
            if r in st.valu_w:
                p = st.valu_w[r]
                if r[0] in "va":
                    if ismf:
                        req(p, 2)
                    elif k in ("perm", "dpp"):
                        req(p, 2)
                    elif k == "rdlane":
                        req(p, 1)
                else:
                    if isvalu or ismf:
                        req(p, 4 if k == "rdlane" else 2)
                    elif k in ("vload", "vstore", "dma"):
                        req(p, 5)
                    elif k in ("salu", "branch", "smem"):
                        req(p, 4)
            if r in st.trans_w and (isvalu or ismf) and k != "trans":
                req(st.trans_w[r], 1)
            if r in st.mf_w:
                p, passes, D = st.mf_w[r]
                if ismf:
                    if r in ins.srcc and not (r in regs_of(ins.args[1]) or r in regs_of(ins.args[2])):
                        same = tuple(ins.srcc) == D and passes == (8 if k == "mfma8" else 4)
                        req(p, 0 if same else (10 if passes == 8 else 6))
                    else:
                        req(p, 12 if passes == 8 else 8)
                elif isvalu or k in MEMK:
                    req(p, 12 if passes == 8 else 8)
            if r in st.dot_w:
                p, dop = st.dot_w[r]
                if not (ins.op == dop and r in regs_of(ins.args[-1]) and r not in regs_of(ins.args[1]) + regs_of(ins.args[2])):
                    req(p, 3)
            if r == ("m0", 0) and k == "dma":
                req(st.m0_w, 1)
        for r in ins.defs:
            if r in st.mf_w:
                p, passes, D = st.mf_w[r]
                if ismf:
                    same = tuple(ins.srcc) == D and tuple(ins.defs) == D and passes == (8 if k == "mfma8" else 4)
                    req(p, 0 if same else (10 if passes == 8 else 6))
                else:
                    req(p, 12 if passes == 8 else 8)
            if r in st.mf_c and (isvalu or k in ("vload", "dsread")):
                p, passes = st.mf_c[r]
                req(p, 7 if passes == 8 else 3)
            if r in st.dot_w and ins.op != st.dot_w[r][1]:
                req(st.dot_w[r][0], 3)
            if r in st.st_d:
                req(st.st_d[r], 2 if (isvalu or ismf) else 1)
        if need > 0:
            self.nop(need)
        self.out.append("    " + ins.text)
        pos = st.pos
        st.pos += ins.cnt
        self.stats["n"] += 1
        if isvalu:
            for r in ins.defs:
                st.valu_w[r] = pos
                st.mf_w.pop(r, None)
                if ins.op.startswith("v_dot"):
                    st.dot_w[r] = (pos, ins.op)
                else:
                    st.dot_w.pop(r, None)
                if k == "trans":
                    st.trans_w[r] = pos
                else:
                    st.trans_w.pop(r, None)
        elif ismf:
            passes = 8 if k == "mfma8" else 4
            D = tuple(ins.defs)
            for r in ins.defs:
                st.mf_w[r] = (pos, passes, D)
                st.valu_w.pop(r, None)
                st.trans_w.pop(r, None)
            for r in ins.srcc:
                st.mf_c[r] = (pos, passes)
        elif k == "salu":
            for r in ins.defs:
                st.valu_w.pop(r, None)
                if r == ("m0", 0):
                    st.m0_w = pos
        elif k in ("vload", "vstore", "dma"):
            st.vm.append(ins)
            if len(st.vm) > 63:
                st.vm = st.vm[-63:]
            for r in ins.store_data():
                st.st_d[r] = pos
            for r in ins.defs:
                st.valu_w.pop(r, None)
                st.mf_w.pop(r, None)
                st.trans_w.pop(r, None)
        elif k in ("dsread", "dswrite"):
            st.lg.append(ins)
            if len(st.lg) > 40:
                raise ValueError("too many outstanding lgkm ops in model")
            for r in ins.defs:
                st.valu_w.pop(r, None)
                st.mf_w.pop(r, None)
                st.trans_w.pop(r, None)
        elif k == "smem":
            st.lg.append(ins)
            st.smem_out = True
        return ins

    def text(self):
        return "\n".join(self.out) + "\n"


class Regs:
    def __init__(self, kind, start, limit):
        self.kind, self.next, self.limit = kind, start, limit
        self.hi = start

    def alloc(self, n=1, align=None):
        if align is None:
            align = 1 if n == 1 else (2 if n == 2 else 4)
        s = (self.next + align - 1) // align * align
        self.next = s + n
        self.hi = max(self.hi, self.next)
        assert self.next <= self.limit, f"out of {self.kind} regs: {self.next}"
        return s

    def mark(self):
        return self.next

    def release(self, m):
        self.next = m


def v(i, n=1):
    return f"v{i}" if n == 1 else f"v[{i}:{i+n-1}]"


def s(i, n=1):
    return f"s{i}" if n == 1 else f"s[{i}:{i+n-1}]"


def merge(main, fill, budget=20, start=0, stop=None):
    out = []
    fi = 0
    nm = 0
    carry = 0
    for e in main:
        out.append(e)
        t = e[0] if isinstance(e, tuple) else e
        if isinstance(t, str) and t.startswith("v_mfma"):
            nm += 1
            if nm <= start or (stop is not None and nm > stop):
                continue
            b = (budget if "32x32" in t else budget * 0.35) + carry
            while fi < len(fill):
                f = fill[fi]
                ft = f[0] if isinstance(f, tuple) else f
                c = Ins(ft).cost if isinstance(ft, str) else 0
                if isinstance(ft, str) and not ft.startswith("v_"):
                    c = 1
                if c > b and b < budget * 0.5:
                    break
                out.append(f)
                fi += 1
                b -= c
                if b <= 0:
                    break
            carry = min(max(b, -8), 8)
    out.extend(fill[fi:])
    return out


def emit_list(a, lst):
    for e in lst:
        if callable(e):
            e(a)
        elif isinstance(e, tuple):
            a(e[0], e[1])
        else:
            a(e)
```

```python
import os
from asmlib import *
from gen import *
import gen

K2_STAGE = 18432
K2_NS = 4
K2_VB = 36864
K2_VS = 3584
K2_LDS = 81920


def decode_k2(a, src, sXcd, sIdx, sS, sI, sJ, sT):
    a(f"s_and_b32 s{sXcd}, s{src}, 7")
    a(f"s_lshr_b32 s{sIdx}, s{src}, 3")
    a(f"s_and_b32 s{sIdx}, s{sIdx}, 31")
    a(f"s_and_b32 s{sS}, s{sXcd}, 3")
    a(f"s_lshr_b32 s{sT}, s{sXcd}, 2")
    a(f"s_lshl_b32 s{sT}, s{sT}, 3")
    a(f"s_and_b32 s{sI}, s{sIdx}, 7")
    a(f"s_add_u32 s{sI}, s{sI}, s{sT}")
    a(f"s_lshr_b32 s{sJ}, s{sIdx}, 3")


def gen_k2(a):
    L = "k2_kernel"
    a.raw(".p2align 8")
    a.raw(f".globl {L}")
    a.raw(f".type {L},@function")
    a.label(L)
    sW2, sWO, sB2, sWS = 16, 20, 24, 28
    sWv, sXcd, sIdx, sS, sI, sJ, sT, sT2, sMb = 32, 33, 34, 35, 36, 37, 38, 39, 40
    a("s_cmp_ge_u32 s2, 512")
    a("s_cbranch_scc1 k2_end")
    T = Stamps(1, base=64, n=14)
    T.start(a)
    a("s_load_dwordx2 s[4:5], s[0:1], 16")
    a("s_load_dwordx4 s[8:11], s[0:1], 48")
    a("s_load_dwordx2 s[14:15], s[0:1], 88")
    vLane, vL16 = 1, 2
    a("v_lshrrev_b32 v3, 6, v0")
    a(f"v_and_b32 v{vLane}, 63, v0")
    a(f"v_readfirstlane_b32 s{sWv}, v3")
    decode_k2(a, 2, sXcd, sIdx, sS, sI, sJ, sT)
    a(f"v_lshlrev_b32 v{vL16}, 4, v{vLane}")
    a(f"s_lshl_b32 s{sMb}, s{sI}, 2")
    a(f"s_add_u32 s{sMb}, s{sMb}, s{sWv}")
    a.waitcnt(lg=0)
    srd(a, sWS, 14, 15, gen.WS_SIZE)
    a("s_cmp_ge_u32 s2, 256")
    a("s_cbranch_scc1 k2_gemm")
    st0 = a.save()
    hi_a = gen_attn(a, T, locals())
    a.label("k2_gemm")
    a.restore(st0)
    T.n = 1
    hi_g = gen_gemm(a, T, locals())
    a.label("k2_end")
    a("s_endpgm")
    a.label("k2_code_end")
    return max(hi_a, hi_g), f"; @launch kernel=k2_kernel grid=(512,1,1) block=(256,1,1) lds={K2_LDS}"


def gen_attn(a, T, E):
    sWS, sWv, sS, sI, sJ, sT, sT2, sMb = (E[k] for k in ("sWS", "sWv", "sS", "sI", "sJ", "sT", "sT2", "sMb"))
    vLane, vL16 = E["vLane"], E["vL16"]
    V = Regs("v", 3, 256)
    vS = V.alloc(144, 4)
    vO = V.alloc(16, 4)
    vR = V.alloc(24, 4)
    vQ = V.alloc(12, 4)
    vQm = V.alloc(8, 4)
    vM = V.alloc(8, 4)
    vKeep = V.alloc(4, 4)
    vVa = V.alloc(4, 4)
    vT = V.alloc(4, 4)
    vKa = V.alloc()
    vVoff = V.alloc()
    vHH4 = V.alloc()
    vG = V.alloc()
    vMx = [V.alloc(), V.alloc()]
    vVb = V.alloc()
    vOne = V.alloc()
    vNeg = V.alloc()
    t0, t1, t2, t3 = vT, vT + 1, vT + 2, vT + 3
    sQ0, sBk, sM0, sOff, sMask, sOst = 41, 42, 43, 44, 46, 45
    sMk = 8
    MK = 48 if not STAMP else 48
    def mk(i):
        if not STAMP:
            return 48 + 2 * i
        pool = [4, 6, 8, 10, 12, 16, 18, 20, 22, 24, 26, 48, 50, 52, 60, 62]
        return pool[i]

    a(f"s_mul_i32 s{sQ0}, s{sS}, 9")
    a(f"s_lshl_b32 s{sT}, s{sJ}, 1")
    a(f"s_add_u32 s{sQ0}, s{sQ0}, s{sT}")
    a(f"v_lshrrev_b32 v{t0}, 1, v{vLane}")
    a(f"v_and_b32 v{t1}, 1, v{vLane}")
    a(f"v_lshl_add_u32 v{t0}, v{t1}, 5, v{t0}")
    a(f"v_lshlrev_b32 v{vVoff}, 4, v{t0}")
    a(f"s_mul_i32 s{sT}, s{sMb}, 108")
    a(f"s_add_u32 s{sT}, s{sT}, s{sQ0}")
    a(f"s_lshl_b32 s{sT}, s{sT}, 10")
    a(f"s_add_u32 s{sT}, s{sT}, {hx(QKV_OFF)}")
    for u in range(3):
        a(f"buffer_load_dwordx4 {v(vQ + 4*u, 4)}, v{vL16}, s[{sWS}:{sWS+3}], s{sT} offen offset:{u*1024}")
    sB = [4, 5, 6]
    for b in range(3):
        a(f"s_mul_i32 s{sT}, s{sWv}, 3")
        a(f"s_lshl_b32 s{sT2}, s{sI}, 2")
        a(f"s_add_u32 s{sT}, s{sT}, s{sT2}")
        a(f"s_add_i32 s{sT}, s{sT}, {b - 8}")
        a(f"s_mul_i32 s{sT2}, s{sT}, 108")
        a(f"s_add_u32 s{sT2}, s{sT2}, s{sQ0}")
        a(f"s_lshl_b32 s{sT2}, s{sT2}, 10")
        a(f"s_add_u32 s{sT2}, s{sT2}, {hx(QKV_OFF + 36 * 1024)}")
        a(f"s_cmp_lt_i32 s{sT}, 0")
        a(f"s_cselect_b32 s{sB[b]}, {hx(OOB)}, s{sT2}")
    a(f"s_mul_i32 s{sM0}, s{sWv}, {3*3072}")
    for b in range(3):
        for u in range(3):
            a(f"s_add_u32 m0, s{sM0}, {b*3072 + u*1024}")
            a(f"s_add_u32 s{sT}, s{sB[b]}, {u*1024}")
            a(f"buffer_load_dwordx4 v{vL16}, s[{sWS}:{sWS+3}], s{sT} offen lds", "K")
    a(f"s_mul_i32 s{sM0}, s{sWv}, {3*K2_VS}")
    for b in range(3):
        for u in range(3):
            a(f"s_add_u32 m0, s{sM0}, {K2_VB + b*K2_VS + u*1152}")
            a(f"s_add_u32 s{sT}, s{sB[b]}, {(36 + u)*1024}")
            a(f"buffer_load_dwordx4 v{vVoff}, s[{sWS}:{sWS+3}], s{sT} offen lds", "V")
    a(f"v_and_b32 v{t0}, 31, v{vLane}")
    a(f"v_lshlrev_b32 v{t1}, 2, v{t0}")
    a(f"s_lshl_b32 s{sT}, s{sMb}, 7")
    a(f"s_add_u32 s{sT}, s{sT}, {hx(G_OFF)}")
    a(f"buffer_load_dword v{vG}, v{t1}, s[{sWS}:{sWS+3}], s{sT} offen")
    code_prefetch(a, t1, vKeep, 46, 44, "k2_code_end", 256, "k2_hereA", nrep=2, begin="k2_kernel")
    a(f"v_min_u32 v{t1}, 11, v{vLane}")
    a(f"v_mul_u32_u24 v{t1}, {K2_VS}, v{t1}")
    a(f"v_mov_b32 v{t2}, 0x3f803f80")
    a(f"v_mov_b32 v{t3}, 0x3f803f80")
    a(f"ds_write_b64 v{t1}, {v(t2, 2)} offset:{K2_VB + 3456}")
    a(f"v_lshrrev_b32 v{vHH4}, 5, v{vLane}")
    a(f"v_lshlrev_b32 v{vHH4}, 2, v{vHH4}")
    a(f"v_sub_u32 v{t0}, v{t0}, v{vHH4}")
    for i in range(16):
        c = 8 * (i // 4) + i % 4
        a(f"v_cmp_le_i32 s[{mk(i)}:{mk(i)+1}], {c}, v{t0}")
    a(f"v_mov_b32 v{t1}, 0xffff")
    a(f"v_mov_b32 v{t2}, 0xffff0000")
    for k in range(8):
        a(f"v_cndmask_b32 v{vM+k}, 0, v{t1}, s[{mk(2*k)}:{mk(2*k)+1}]")
        a(f"v_cndmask_b32 v{t3}, 0, v{t2}, s[{mk(2*k+1)}:{mk(2*k+1)+1}]")
        a(f"v_or_b32 v{vM+k}, v{vM+k}, v{t3}")
    a(f"s_mul_i32 s{sT}, s{sWv}, 3072")
    a(f"v_add_u32 v{vKa}, s{sT}, v{vL16}")
    a(f"v_bfe_u32 v{t0}, v{vLane}, 2, 2")
    a(f"v_add_u32 v{t0}, v{t0}, v{vHH4}")
    a(f"v_lshlrev_b32 v{vVb}, 5, v{t0}")
    a(f"v_and_b32 v{t0}, 1, v{vLane}")
    a(f"v_lshl_add_u32 v{vVb}, v{t0}, 4, v{vVb}")
    a(f"v_bfe_u32 v{t0}, v{vLane}, 1, 1")
    a(f"v_lshl_add_u32 v{vVb}, v{t0}, 3, v{vVb}")
    a(f"v_bfe_u32 v{t0}, v{vLane}, 4, 1")
    a(f"v_mul_u32_u24 v{t0}, 1152, v{t0}")
    a(f"v_add_u32 v{vVb}, v{vVb}, v{t0}")
    a(f"s_mul_i32 s{sT}, s{sWv}, {K2_VS}")
    a(f"s_add_u32 s{sT}, s{sT}, {K2_VB}")
    a(f"v_add_u32 v{vVb}, s{sT}, v{vVb}")
    a(f"s_add_u32 s{sT}, s{sT}, 3456")
    a(f"v_mov_b32 v{vOne}, s{sT}")
    a(f"s_cmp_eq_u32 s{sJ}, 3")
    a(f"s_cselect_b32 s{sT}, 0, 19")
    a(f"v_and_b32 v{t0}, 19, v{vLane}")
    a(f"v_cmp_eq_u32 s[{sMask}:{sMask+1}], s{sT}, v{t0}")
    a(f"v_mov_b32 v{vNeg}, 0xff7fffff")
    a(f"s_mul_i32 s{sOst}, s{sMb}, 36")
    a(f"s_add_u32 s{sOst}, s{sOst}, s{sQ0}")
    a(f"s_lshl_b32 s{sOst}, s{sOst}, 10")
    a(f"s_add_u32 s{sOst}, s{sOst}, {hx(O_OFF)}")
    T(a)
    a.wait_tag("K", want_lg=True)
    a("s_barrier")
    T(a)

    def S(n):
        return vS + 16 * n

    for hd in range(2):
        a.comment(f"---- head {hd}")

        order = [8, 0, 1, 2, 3, 4, 5, 6, 7]

        def kread2(i):
            n = order[i]
            return [f"ds_read_b128 {v(vR + 8*(i % 3) + 4*u, 4)}, v{vKa} offset:{n*3072 + (hd+u)*1024}" for u in range(2)]
        emit_list(a, kread2(0) + kread2(1))
        a(f"s_lshl_b32 s{sOff}, s{sJ}, 2")
        if hd:
            a(f"s_add_u32 s{sOff}, s{sOff}, 2")
        a(f"v_subrev_u32 v{t0}, s{sOff}, v{vHH4}")
        for u in range(2):
            for p in range(4):
                c0 = 16 * u + 8 * (p // 2) + 2 * (p % 2)
                tt = t1 + (p % 2)
                a(f"v_add_u32 v{tt}, {c0}, v{t0}")
                a(f"v_cmp_gt_u32 vcc, 18, v{tt}")
                a(f"v_cndmask_b32_e64 v{vQm + 4*u + p}, 0, v{vQ + 4*(hd+u) + p}, vcc")
        for tg in range(2):
            for z in range(2):
                i = 2 * tg + z
                a(f"v_add_u32 v{vVa+i}, {hd*1152 + (16*tg + 8*z)*32}, v{vVb}")
                a(f"v_cndmask_b32 v{vVa+i}, v{vVa+i}, v{vOne}, s[{sMask}:{sMask+1}]")
        a(f"v_mov_b32 v{vMx[0]}, v{vNeg}")
        a(f"v_mov_b32 v{vMx[1]}, v{vNeg}")

        def maxes(n):
            return [f"v_max3_f32 v{vMx[k % 2]}, v{S(n) + 2*k}, v{S(n) + 2*k + 1}, v{vMx[k % 2]}" for k in range(8)]
        for i in range(9):
            n = order[i]
            if i + 2 < 9:
                emit_list(a, kread2(i + 2))
            a(f"{MF32} {v(S(n), 16)}, {v(vR + 8*(i % 3), 4)}, {v(vQm, 4)}, 0")
            a(f"{MF32} {v(S(n), 16)}, {v(vR + 8*(i % 3) + 4, 4)}, {v(vQm + 4, 4)}, {v(S(n), 16)}")
        a(f"s_cmp_ge_u32 s{sMb}, 8")
        a(f"s_cbranch_scc1 k2_nofix{hd}")
        a.nop(12)
        for n in range(8):
            a(f"s_cmp_ge_u32 s{sMb}, {8 - n}")
            a(f"s_cbranch_scc1 k2_nofix{hd}")
            for i in range(16):
                a(f"v_mov_b32 v{S(n) + i}, v{vNeg}")
        a.label(f"k2_nofix{hd}")
        if hd == 0:
            a.wait_tag("V")
            a("s_barrier")
            T(a)

        def vread(n, tg, slot):
            return [f"ds_read_b64_tr_b16 {v(vR + 4*slot + 2*z, 2)}, v{vVa + 2*tg + z} offset:{n*K2_VS}" for z in range(2)]
        for i in range(16):
            a(f"v_cndmask_b32 v{S(8)+i}, v{S(0)+i}, v{S(8)+i}, s[{mk(i)}:{mk(i)+1}]")
        for n in (8, 1, 2, 3, 4, 5, 6, 7):
            emit_list(a, maxes(n))
        a(f"v_max_f32 v{t0}, v{vMx[0]}, v{vMx[1]}")
        a(f"v_mov_b32 v{t1}, v{t0}")
        seq = [(n, n) for n in range(1, 8)] + [(8, 8), (0, 0)]
        frs = [(vb, tg) for (_, vb) in seq for tg in range(2)]
        for f in range(4):
            emit_list(a, vread(frs[f][0], frs[f][1], f % 6))
        a(f"v_permlane32_swap_b32 v{t0}, v{t1}")
        a(f"v_max_f32 v{vMx[0]}, v{t0}, v{t1}")

        def soft(n):
            o = []
            for h2 in range(2):
                b = S(n) + 8 * h2
                o += [f"v_sub_f32 v{b+i}, v{b+i}, v{vMx[0]}" for i in range(8)]
                o += [f"v_exp_f32 v{b+i}, v{b+i}" for i in range(8)]
                o += [f"v_cvt_pk_bf16_f32 v{S(n) + 4*h2 + k}, v{b+2*k}, v{b+2*k+1}" for k in range(4)]
            return o

        def pv(idx):
            pb, vb = seq[idx]
            o = []
            for tg in range(2):
                f = 2 * idx + tg
                m = f"{MF32} {v(vO, 16)}, {v(vR + 4*(f % 6), 4)}, {v(S(pb) + 4*tg, 4)}, {'0' if f == 0 else v(vO, 16)}"
                nx = vread(frs[f + 4][0], frs[f + 4][1], (f + 4) % 6) if f + 4 < 18 else []
                o.append(nx + [m])
            return o
        emit_list(a, soft(1))
        for idx in range(8):
            nxt = seq[idx + 1][0]
            if nxt != 0:
                so = soft(nxt)
                if nxt == 8:
                    so += [f"v_bfi_b32 v{S(0)+k}, v{vM+k}, 0, v{S(8)+k}" for k in range(8)]
                    so += [f"v_and_b32 v{S(8)+k}, v{vM+k}, v{S(8)+k}" for k in range(8)]
                p = pv(idx)
                emit_list(a, so[:6] + p[0] + so[6:26] + p[1] + so[26:])
            else:
                p = pv(idx)
                emit_list(a, p[0] + p[1])
        p = pv(8)
        emit_list(a, p[0] + p[1])
        a(f"s_cmp_eq_u32 s{sJ}, 3")
        a(f"s_cselect_b64 vcc, -1, 0")
        a(f"v_cndmask_b32_e64 v{t0}, v{vO+12}, v{vO}, vcc")
        a(f"v_mov_b32 v{t1}, v{t0}")
        a(f"v_permlane32_swap_b32 v{t0}, v{t1}")
        a(f"v_cndmask_b32_e64 v{t0}, v{t1}, v{t0}, vcc")
        a(f"v_rcp_f32 v{t0}, v{t0}")
        a(f"v_mul_f32 v{t0}, v{t0}, v{vG}")
        for i in range(16):
            a(f"v_mul_f32 v{vO+i}, v{vO+i}, v{t0}")
        for k in range(8):
            a(f"v_cvt_pk_bf16_f32 v{vO+k}, v{vO+2*k}, v{vO+2*k+1}")
        a(f"s_lshl_b32 s{sOff}, s{sJ}, 2")
        a(f"v_mov_b32 v{t3}, {hx(OOB)}")
        if hd == 0:
            for pp in range(2):
                a(f"v_add_u32 v{t1}, {8*pp}, v{vHH4}")
                a(f"v_cmp_le_u32 vcc, s{sOff}, v{t1}")
                a(f"v_cndmask_b32_e64 v{t1+pp}, v{t3}, v{vL16}, vcc")
                a(f"buffer_store_dwordx2 {v(vO + 2*pp, 2)}, v{t1+pp}, s[{sWS}:{sWS+3}], s{sOst} offen offset:{8*pp} sc1")
            for k in range(4):
                a(f"v_mov_b32 v{vKeep+k}, v{vO+4+k}")
        else:
            for p in range(4):
                c0 = 8 * (p // 2) + 2 * (p % 2)
                a(f"v_add_u32 v{t1}, {c0 - 2}, v{vHH4}")
                a(f"v_cmp_gt_i32 vcc, s{sOff}, v{t1}")
                a(f"v_cndmask_b32_e64 v{vKeep+p}, v{vO+p}, v{vKeep+p}, vcc")
            a(f"buffer_store_dwordx4 {v(vKeep, 4)}, v{vL16}, s[{sWS}:{sWS+3}], s{sOst} offen offset:1024 sc1")
            for pp in range(2):
                a(f"v_add_u32 v{t1}, {8*pp - 4}, v{vHH4}")
                a(f"v_cmp_gt_i32 vcc, s{sOff}, v{t1}")
                a(f"v_cndmask_b32_e64 v{t1+pp}, v{t3}, v{vL16}, vcc")
                a(f"buffer_store_dwordx2 {v(vO + 4 + 2*pp, 2)}, v{t1+pp}, s[{sWS}:{sWS+3}], s{sOst} offen offset:{2048 + 8*pp} sc1")
        T(a)
    a.waitcnt(vm=0)
    a("s_barrier")
    a(f"s_cmp_lg_u32 s{sWv}, 0")
    a("s_cbranch_scc1 k2_attn_done")
    a(f"s_lshl_b32 s{sT}, s{sI}, 2")
    a(f"s_add_u32 s{sT}, s{sT}, s{sS}")
    a(f"s_lshl_b32 s{sT}, s{sT}, 7")
    a(f"s_add_u32 s{sT}, s{sT}, {hx(F_OFF)}")
    a(f"v_mov_b32 v{t0}, 1")
    a("s_mov_b64 exec, 1")
    a(f"buffer_atomic_add v{t0}, off, s[{sWS}:{sWS+3}], s{sT}")
    a("s_mov_b64 exec, -1")
    a.label("k2_attn_done")
    T.dump(a, sWS, sWv, 4, vT)
    a("s_endpgm")
    return V.hi


def gen_gemm(a, T, E):
    sW2, sWO, sB2, sWS, sWv, sS, sI, sJ, sT, sT2, sMb = (E[k] for k in ("sW2", "sWO", "sB2", "sWS", "sWv", "sS", "sI", "sJ", "sT", "sT2", "sMb"))
    vLane, vL16 = E["vLane"], E["vL16"]
    V = Regs("v", 3, 256)
    acc = V.alloc(64, 4)
    accs = V.alloc(8, 4)
    DA = 4
    vA = V.alloc(8 * DA, 4)
    RB = 6
    vB = V.alloc(4 * RB, 4)
    vSF = V.alloc(8, 4)
    vZ = V.alloc(4, 4)
    vb2 = V.alloc(36, 4)
    vT = V.alloc(4, 4)
    vRd = [V.alloc(), V.alloc()]
    vSRd = [V.alloc(), V.alloc()]
    vOffM = V.alloc()
    vOffS = V.alloc()
    vF = [V.alloc(), V.alloc(), V.alloc()]
    vPoll = V.alloc()
    vSSt = V.alloc()
    t0, t1, t2, t3 = vT, vT + 1, vT + 2, vT + 3
    sDM, sDS, sMm, sMs, sAo, sFl, sPo, sDMo, sDSo = 41, 42, 43, 44, 45, 46, 47, 48, 49

    srd(a, sW2, 8, 9, 4608 * 1152)
    srd(a, sWO, 4, 5, 576 * 1152)
    srd(a, sB2, 10, 11, 576 * 2)
    a(f"v_bfe_u32 v{t0}, v{vLane}, 2, 2")
    a(f"v_lshrrev_b32 v{t1}, 4, v{vLane}")
    a(f"v_and_b32 v{t2}, 3, v{vLane}")
    a(f"v_mul_u32_u24 v{vOffM}, 1152, v{t0}")
    a(f"v_lshl_add_u32 v{vOffM}, v{t1}, 6, v{vOffM}")
    a(f"v_lshl_add_u32 v{vOffM}, v{t2}, 4, v{vOffM}")
    a(f"v_lshrrev_b32 v{t3}, 1, v{vLane}")
    a(f"v_mul_u32_u24 v{vOffS}, 1152, v{t3}")
    a(f"v_and_b32 v{t3}, 1, v{vLane}")
    a(f"v_lshl_add_u32 v{vOffS}, v{t3}, 4, v{vOffS}")
    a(f"s_mul_i32 s{sT}, s{sWv}, {16*1152}")
    a(f"s_lshl_b32 s{sT2}, s{sJ}, 8")
    a(f"s_add_u32 s{sDMo}, s{sT}, s{sT2}")
    a(f"s_lshl_b32 s{sT2}, s{sJ}, 5")
    a(f"s_add_u32 s{sDSo}, s{sT}, s{sT2}")
    a(f"s_add_u32 s{sDSo}, s{sDSo}, 1024")
    a(f"s_mul_i32 s{sT}, s{sS}, {1152*1152}")
    a(f"s_add_u32 s{sDM}, s{sDMo}, s{sT}")
    a(f"s_add_u32 s{sDS}, s{sDSo}, s{sT}")
    a(f"s_mul_i32 s{sT}, s{sS}, {144*1152}")
    a(f"s_add_u32 s{sDMo}, s{sDMo}, s{sT}")
    a(f"s_add_u32 s{sDSo}, s{sDSo}, s{sT}")
    a(f"s_lshl_b32 s{sMm}, s{sWv}, 12")
    a(f"s_lshl_b32 s{sMs}, s{sWv}, 9")
    a(f"s_mul_i32 s{sAo}, s{sMb}, 288")
    a(f"s_mul_i32 s{sT}, s{sS}, 72")
    a(f"s_add_u32 s{sAo}, s{sAo}, s{sT}")
    a(f"s_lshl_b32 s{sAo}, s{sAo}, 10")

    NQ = 21

    def dma(q):
        out = []
        if q >= NQ:
            return out
        wo = q >= 18
        sr = sWO if wo else sW2
        bm, bs = (sDMo, sDSo) if wo else (sDM, sDS)
        row0 = (q - 18 if wo else q) * 64
        slot = (q % K2_NS) * K2_STAGE
        for rq in range(4):
            out += [f"s_add_u32 m0, s{sMm}, {slot + rq*1024}",
                    f"s_add_u32 s{sT}, s{bm}, {(row0 + 4*rq) * 1152}",
                    (f"buffer_load_dwordx4 v{vOffM}, s[{sr}:{sr+3}], s{sT} offen lds", f"D{q}")]
        out += [f"s_add_u32 m0, s{sMs}, {slot + 16384}",
                f"s_add_u32 s{sT}, s{bs}, {row0 * 1152}",
                "s_mov_b32 exec_hi, 0",
                (f"buffer_load_dwordx4 v{vOffS}, s[{sr}:{sr+3}], s{sT} offen lds", f"D{q}"),
                "s_mov_b32 exec_hi, -1"]
        return out

    NT = 41

    def aload(t):
        out = []
        if t >= NT:
            return out
        if t == 36:
            out += [f"s_mul_i32 s{sAo}, s{sMb}, 36",
                    f"s_mul_i32 s{sT2}, s{sS}, 9",
                    f"s_add_u32 s{sAo}, s{sAo}, s{sT2}",
                    f"s_lshl_b32 s{sAo}, s{sAo}, 10",
                    f"s_add_u32 s{sAo}, s{sAo}, {hx(O_OFF)}"]
        for kq in range(2):
            if t == 40 and kq == 1:
                continue
            out.append(f"buffer_load_dwordx4 {v(vA + 8*(t % DA) + 4*kq, 4)}, v{vL16}, s[{sWS}:{sWS+3}], s{sAo} offen offset:{((t % 2)*2 + kq)*1024}" + (" sc1" if t >= 36 else ""))
        if t % 2 == 1:
            out.append(f"s_add_u32 s{sAo}, s{sAo}, 4096")
        return out

    emit_list(a, aload(0) + dma(0) + aload(1) + aload(2) + dma(1) + aload(3) + dma(2))
    a(f"s_cmp_eq_u32 s{sS}, 0")
    a(f"s_cselect_b32 s{sT2}, 0, {hx(OOB)}")
    a(f"s_lshl_b32 s{sT}, s{sJ}, 8")
    a(f"s_add_u32 s{sT}, s{sT}, s{sT2}")
    a(f"v_lshrrev_b32 v{t3}, 5, v{vLane}")
    a(f"v_lshlrev_b32 v{vSSt}, 3, v{t3}")
    for cb in range(4):
        for g in range(4):
            a(f"buffer_load_dwordx2 {v(vb2 + 8*cb + 2*g, 2)}, v{vSSt}, s[{sB2}:{sB2+3}], s{sT} offen offset:{64*cb + 16*g}")
    a(f"s_lshl_b32 s{sT}, s{sJ}, 5")
    a(f"s_add_u32 s{sT}, s{sT}, s{sT2}")
    a(f"v_lshlrev_b32 v{vPoll}, 3, v{t1}")
    a(f"buffer_load_dwordx2 {v(vb2 + 32, 2)}, v{vPoll}, s[{sB2}:{sB2+3}], s{sT} offen offset:1024")
    a(f"s_lshl_b32 s{sT}, s{sMb}, 7")
    a(f"s_add_u32 s{sT}, s{sT}, {hx(G_OFF)}")
    a(f"v_and_b32 v{vZ}, 31, v{vLane}")
    a(f"v_lshlrev_b32 v{vZ}, 2, v{vZ}")
    a(f"buffer_load_dword v{vF[0]}, v{vZ}, s[{sWS}:{sWS+3}], s{sT} offen")
    a(f"v_and_b32 v{vZ+1}, 15, v{vLane}")
    a(f"v_lshlrev_b32 v{vZ+1}, 2, v{vZ+1}")
    a(f"buffer_load_dword v{vF[1]}, v{vZ+1}, s[{sWS}:{sWS+3}], s{sT} offen")
    a(f"buffer_load_dword v{vF[2]}, v{vZ+1}, s[{sWS}:{sWS+3}], s{sT} offen offset:64")
    code_prefetch(a, vZ + 2, vSF, 50, 52, "k2_code_end", 256, "k2_hereG", nrep=2, begin="k2_gemm")
    a(f"v_lshlrev_b32 v{vRd[0]}, 6, v{t0}")
    a(f"v_lshl_add_u32 v{vRd[0]}, v{t2}, 3, v{vRd[0]}")
    a(f"v_lshl_add_u32 v{vRd[0]}, v{t3}, 10, v{vRd[0]}")
    a(f"v_and_b32 v{vZ+2}, 1, v{t1}")
    a(f"v_lshl_add_u32 v{vRd[0]}, v{vZ+2}, 5, v{vRd[0]}")
    a(f"v_add_u32 v{vRd[1]}, {2*K2_STAGE}, v{vRd[0]}")
    a(f"v_lshlrev_b32 v{vSRd[0]}, 9, v{vZ+2}")
    a(f"v_lshl_add_u32 v{vSRd[0]}, v{t3}, 7, v{vSRd[0]}")
    a(f"v_lshl_add_u32 v{vSRd[0]}, v{t0}, 5, v{vSRd[0]}")
    a(f"v_lshl_add_u32 v{vSRd[0]}, v{t2}, 3, v{vSRd[0]}")
    a(f"v_add_u32 v{vSRd[1]}, {2*K2_STAGE}, v{vSRd[0]}")
    a(f"v_lshlrev_b32 v{vSSt}, 2, v{vZ+1}")
    a(f"v_lshl_add_u32 v{vSSt}, v{vZ+2}, 9, v{vSSt}")
    a(f"v_lshl_add_u32 v{vSSt}, v{t3}, 3, v{vSSt}")
    a(f"s_lshl_b32 s{sFl}, s{sI}, 2")
    a(f"s_add_u32 s{sFl}, s{sFl}, s{sS}")
    a(f"s_lshl_b32 s{sFl}, s{sFl}, 7")
    a(f"s_add_u32 s{sFl}, s{sFl}, {hx(F_OFF)}")
    a(f"s_lshl_b32 s{sPo}, s{sS}, 6")
    a(f"s_add_u32 s{sPo}, s{sPo}, s{sMb}")
    a(f"s_mul_i32 s{sPo}, s{sPo}, 36")
    a(f"s_lshl_b32 s{sPo}, s{sPo}, 10")
    a(f"s_add_u32 s{sPo}, s{sPo}, {hx(P_OFF)}")
    for i in range(4):
        a(f"v_mov_b32 v{vZ+i}, 0")
    for k in range(32):
        a(f"v_lshlrev_b32 v{acc + 2*k}, 16, v{vb2 + k}")
        a(f"v_and_b32 v{acc + 2*k + 1}, 0xffff0000, v{vb2 + k}")
    for h2 in range(2):
        for k in range(2):
            a(f"v_lshlrev_b32 v{accs + 4*h2 + 2*k}, 16, v{vb2 + 32 + k}")
            a(f"v_and_b32 v{accs + 4*h2 + 2*k + 1}, 0xffff0000, v{vb2 + 32 + k}")
    for i in range(3):
        a(f"v_sub_f32 v{vF[i]}, 1.0, v{vF[i]}")
    T(a)
    a.wait_tag("D1")
    a("s_barrier")
    T(a)

    frs = []
    for t in range(NT):
        for kq in range(2):
            if t == 40 and kq == 1:
                continue
            for cb in range(4):
                frs.append((t, kq, cb))

    def bread(f):
        if f >= len(frs):
            return []
        t, kq, cb = frs[f]
        q = t // 2
        sl = q % K2_NS
        o = (sl % 2) * K2_STAGE + ((t % 2) * 2 + kq) * 4096 + cb * 256
        return [f"ds_read_b64_tr_b16 {v(vB + 4*(f % RB) + 2*z, 2)}, v{vRd[sl // 2]} offset:{o + 2048*z}" for z in range(2)]

    def sread(t):
        if t >= NT:
            return []
        q = t // 2
        sl = q % K2_NS
        o = (sl % 2) * K2_STAGE + 16384 + (t % 2) * 1024
        return [f"ds_read_b64_tr_b16 {v(vSF + 4*(t % 2) + 2*z, 2)}, v{vSRd[sl // 2]} offset:{o + 256*z}" for z in range(2)]

    for f in range(RB - 1):
        emit_list(a, bread(f))
    emit_list(a, sread(0))
    pend = []
    f = 0
    for t in range(NT):
        q = t // 2
        ex = []
        if t % 2 == 0:
            ex = dma(q + 3)
        if t == 22:
            a(f"buffer_load_dword v{vPoll}, off, s[{sWS}:{sWS+3}], s{sFl} sc1")
        if t == 36:
            T(a)
            for e in pend:
                emit_list(a, e)
            pend = []
            for i in range(64):
                a(f"v_mul_f32 v{acc+i}, v{acc+i}, v{vF[0]}")
            for h2 in range(2):
                for i in range(4):
                    a(f"v_mul_f32 v{accs+4*h2+i}, v{accs+4*h2+i}, v{vF[1+h2]}")
        slot = vA + 8 * (t % DA)
        n8 = 4 if t == 40 else 8
        for i in range(n8):
            _, kq, cb = frs[f]
            emit_list(a, bread(f + RB - 1))
            a(f"{MF32} {v(acc + 16*cb, 16)}, {v(vB + 4*(f % RB), 4)}, {v(slot + 4*kq, 4)}, {v(acc + 16*cb, 16)}")
            f += 1
            if i == 1 and pend:
                emit_list(a, pend.pop(0))
            if i == 2 and pend:
                emit_list(a, pend.pop(0))
            if i == 3:
                emit_list(a, sread(t + 1))
            if i >= 3 and ex:
                k = 3 if len(ex) > 5 else 5
                emit_list(a, ex[:k])
                ex = ex[k:]
        emit_list(a, ex)
        f1 = vZ if t == 40 else slot + 4
        for i in range(4):
            a(f"v_permlane16_swap_b32 v{slot+i}, v{f1+i}")
        nl = aload(t + DA)
        if t + DA == 36:
            def poll(a):
                a(f"v_readfirstlane_b32 s{sT2}, v{vPoll}")
                a(f"s_cmp_ge_u32 s{sT2}, 4")
                a("s_cbranch_scc1 k2_ready")
                a.raw("    s_mov_b32 s53, 0x20000")
                a.label("k2_spin")
                a.raw("    s_sub_u32 s53, s53, 1")
                a.raw("    s_cbranch_scc1 k2_ready")
                a.raw("    s_sleep 2")
                a.raw(f"    buffer_load_dword v{vPoll}, off, s[{sWS}:{sWS+3}], s{sFl} sc1")
                a.raw("    s_waitcnt vmcnt(0)")
                a.raw(f"    v_readfirstlane_b32 s{sT2}, v{vPoll}")
                a.raw("    s_nop 3")
                a.raw(f"    s_cmp_lt_u32 s{sT2}, 4")
                a.raw("    s_cbranch_scc1 k2_spin")
                a.label("k2_ready")
            nl = [poll] + nl
        pend = [[f"{MF16} {v(accs, 4)}, {v(vSF + 4*(t % 2), 4)}, {v(slot, 4)}, {v(accs, 4)}"],
                [f"{MF16} {v(accs + 4, 4)}, {v(vSF + 4*(t % 2), 4)}, {v(f1, 4)}, {v(accs + 4, 4)}"] + nl]
        if t % 2 == 1 and t < NT - 1:
            a.wait_tag(f"D{q+2}")
            a("s_barrier")
            if q in (5, 11):
                T(a)
    for e in pend:
        emit_list(a, e)
    T(a)
    a(f"s_lshl_b32 s{sT}, s{sJ}, 13")
    a(f"s_add_u32 s{sT}, s{sT}, s{sPo}")
    for cb in range(4):
        for u in range(2):
            b = acc + 16 * cb + 8 * u
            for k in range(4):
                a(f"v_cvt_pk_bf16_f32 v{b+k}, v{b+2*k}, v{b+2*k+1}")
            if cb == 2 and u == 0:
                a(f"s_add_u32 s{sT}, s{sT}, 4096")
            a(f"buffer_store_dwordx4 {v(b, 4)}, v{vL16}, s[{sWS}:{sWS+3}], s{sT} offen offset:{((cb % 2)*2 + u)*1024}")
    a(f"s_lshl_b32 s{sT}, s{sJ}, 10")
    a(f"s_add_u32 s{sT}, s{sT}, s{sPo}")
    a(f"s_add_u32 s{sT}, s{sT}, {32*1024}")
    for h2 in range(2):
        b = accs + 4 * h2
        for k in range(2):
            a(f"v_cvt_pk_bf16_f32 v{b+k}, v{b+2*k}, v{b+2*k+1}")
        a(f"buffer_store_dwordx2 {v(b, 2)}, v{vSSt}, s[{sWS}:{sWS+3}], s{sT} offen offset:{256*h2}")
    T.dump(a, sWS, sWv, 4, vT)
    a("s_endpgm")
    return V.hi


def gen_k3(a):
    L = "k3_kernel"
    a.raw(".p2align 8")
    a.raw(f".globl {L}")
    a.raw(f".type {L},@function")
    a.label(L)
    NWG = 576
    sO, sWS = 16, 20
    a(f"s_cmp_ge_u32 s2, {NWG}")
    a("s_cbranch_scc1 k3_end")
    a("s_load_dwordx2 s[4:5], s[0:1], 72")
    a("s_load_dwordx2 s[6:7], s[0:1], 88")
    a("v_lshrrev_b32 v3, 6, v0")
    a("v_and_b32 v1, 63, v0")
    a("v_readfirstlane_b32 s24, v3")
    a("v_lshlrev_b32 v2, 4, v1")
    a("s_lshl_b32 s25, s2, 2")
    a("s_add_u32 s25, s25, s24")
    a(f"s_mul_hi_u32 s26, s25, {hx((1 << 32) // 36 + 1)}")
    a("s_mul_i32 s27, s26, 36")
    a("s_sub_u32 s27, s25, s27")
    a("s_lshl_b32 s28, s25, 10")
    a(f"s_add_u32 s28, s28, {hx(P_OFF)}")
    a("v_and_b32 v4, 31, v1")
    a("v_mul_u32_u24 v4, 1152, v4")
    a("v_lshrrev_b32 v5, 5, v1")
    a("v_lshl_add_u32 v4, v5, 4, v4")
    a(f"s_mul_i32 s29, s26, {32*1152}")
    a("s_lshl_b32 s30, s27, 5")
    a("s_add_u32 s29, s29, s30")
    a.waitcnt(lg=0)
    srd(a, sWS, 6, 7, gen.WS_SIZE)
    srd(a, sO, 4, 5, 2048 * 1152)
    for sp in range(4):
        a(f"buffer_load_dwordx4 {v(8 + 4*sp, 4)}, v2, s[{sWS}:{sWS+3}], s28 offen")
        if sp < 3:
            a(f"s_add_u32 s28, s28, {64*36*1024}")
    for sp in range(4):
        for k in range(4):
            src = 8 + 4 * sp + k
            lo, hi = 24 + 2 * k, 25 + 2 * k
            if sp == 0:
                a(f"v_lshlrev_b32 v{lo}, 16, v{src}")
                a(f"v_and_b32 v{hi}, 0xffff0000, v{src}")
            else:
                a(f"v_lshlrev_b32 v6, 16, v{src}")
                a(f"v_and_b32 v7, 0xffff0000, v{src}")
                a(f"v_add_f32 v{lo}, v{lo}, v6")
                a(f"v_add_f32 v{hi}, v{hi}, v7")
    for k in range(4):
        a(f"v_cvt_pk_bf16_f32 v{8+k}, v{24+2*k}, v{25+2*k}")
    a("v_permlane32_swap_b32 v8, v10")
    a("v_permlane32_swap_b32 v9, v11")
    a(f"buffer_store_dwordx4 v[8:11], v4, s[{sO}:{sO+3}], s29 offen")
    a.label("k3_end")
    a("s_endpgm")
    return 32, f"; @launch kernel=k3_kernel grid=({NWG},1,1) block=(256,1,1) lds=0"
```

```python
import sys, struct, math
sys.path.insert(0, "dev")
from asmlib import *

NAME = "gated_mix__sliding_block__mixer_channel_mlp__prompt"

H_OFF = 0
QKV_OFF = 0x1200000
O_OFF = 0x18C0000
P_OFF = 0x1B00000
G_OFF = 0x2400000
F_OFF = 0x2410000
WS_SIZE = 0x2420000
OOB = 0x40000000


def f2u(x):
    return struct.unpack("<I", struct.pack("<f", x))[0]


def hx(x):
    return f"0x{x & 0xffffffff:x}"


LOG2E = 1.4426950408889634
GC1 = -2.0 * math.sqrt(2.0 / math.pi) * LOG2E
GC2 = GC1 * 0.044715
QSCALE = LOG2E / math.sqrt(18.0)

import os
STAMP = bool(os.environ.get("STAMP"))
T_OFF = 0x2500000
if STAMP:
    WS_SIZE = 0x2800000


class Stamps:
    def __init__(self, kidx, base=60, n=18):
        self.n = 0
        self.kidx = kidx
        self.base = base
        self.max = n

    def start(self, a):
        if not STAMP:
            return
        a("s_memrealtime s[56:57]")
        self.n = 0
        self(a)

    def __call__(self, a):
        if not STAMP:
            return
        assert self.n < self.max
        a(f"s_memtime s[{self.base+2*self.n}:{self.base+1+2*self.n}]")
        self.n += 1

    def dump(self, a, sWS, sWv, nw, vt):
        if not STAMP:
            return
        self(a)
        a("s_memrealtime s[58:59]")
        a.waitcnt(lg=0)
        a(f"s_mul_i32 s54, s2, {nw}")
        a(f"s_add_u32 s54, s54, s{sWv}")
        a(f"s_lshl_b32 s54, s54, 7")
        a(f"s_add_u32 s54, s54, {hx(T_OFF + self.kidx * 0x80000)}")
        a(f"v_mov_b32 v{vt}, 0")
        vals = ["s56", "s58", str(self.n)] + [f"s{self.base+2*i}" for i in range(self.n)]
        for i, x in enumerate(vals):
            a(f"v_mov_b32 v{vt+1}, {x}")
            a(f"buffer_store_dword v{vt+1}, v{vt}, s[{sWS}:{sWS+3}], s54 offen offset:{4*i}")


MF32 = "v_mfma_f32_32x32x16_bf16"
MF16 = "v_mfma_f32_16x16x32_bf16"


def srd(a, d, lo, hi, size):
    a(f"s_mov_b32 s{d}, s{lo}")
    a(f"s_and_b32 s{d+1}, s{hi}, 0xffff")
    a(f"s_mov_b32 s{d+2}, {hx(size)}")
    a(f"s_mov_b32 s{d+3}, 0x20000")


def kernel_desc(label, nv, ns=100):
    nv = (nv + 7) // 8 * 8
    return f""".section .rodata,"a"
.p2align 6
.amdhsa_kernel {label}
  .amdhsa_next_free_vgpr {nv}
  .amdhsa_next_free_sgpr {ns}
  .amdhsa_accum_offset {min(256, (nv + 3) // 4 * 4)}
  .amdhsa_group_segment_fixed_size 0
  .amdhsa_kernarg_size 96
  .amdhsa_user_sgpr_count 2
  .amdhsa_user_sgpr_kernarg_segment_ptr 1
  .amdhsa_system_sgpr_workgroup_id_x 1
.end_amdhsa_kernel
"""


def code_prefetch(a, vtmp, vdst, spc, slim, endlabel, nthreads, here, nrep=1, begin=None):
    a(f"s_getpc_b64 s[{spc}:{spc+1}]")
    a.label(here)
    if begin is not None:
        a(f"s_sub_u32 s{spc}, s{spc}, {here}-{begin}")
        a(f"s_subb_u32 s{spc+1}, s{spc+1}, 0")
    else:
        begin = here
    a(f"s_mov_b32 s{slim}, {endlabel}-{begin}-4")
    a(f"v_lshlrev_b32 v{vtmp}, 6, v0")
    for r in range(nrep):
        if r:
            a(f"v_add_u32 v{vtmp}, {nthreads*64}, v{vtmp}")
        a(f"v_min_u32 v{vdst+r}, s{slim}, v{vtmp}")
        a(f"global_load_dword v{vdst+r}, v{vdst+r}, s[{spc}:{spc+1}]")


K1_STAGE = 73728
K1_AR = K1_STAGE + 8192
K1_CS = 159744
K1_LDS = K1_CS + 4096
SCHEME = os.environ.get("SCHEME", "pp")


def gen_k1(a):
    L = "k1_kernel"
    a.raw(".p2align 8")
    a.raw(f".globl {L}")
    a.raw(f".type {L},@function")
    a.label(L)
    V = Regs("v", 1, 256)
    vA = V.alloc(144, 4)
    acc = [V.alloc(16, 4), V.alloc(16, 4)]
    RB = int(os.environ.get("RB", "6"))
    vB = V.alloc(4 * RB, 4)
    vCsF = [V.alloc(4, 4), V.alloc(4, 4)]
    vCsAcc = V.alloc(4, 4)
    vSel = V.alloc(4, 4)
    vCs = [V.alloc(4, 4), V.alloc(4, 4)]
    vB1 = [V.alloc(4, 4), V.alloc(4, 4)]
    vT = V.alloc(4, 4)
    vRd = [[V.alloc(), V.alloc()], [V.alloc(), V.alloc()]]
    vOffB = V.alloc()
    vCsRd = V.alloc()
    vE = V.alloc()
    vSt = V.alloc()
    vCsA = V.alloc()
    vRstd = V.alloc()
    vNrm = V.alloc()
    vC2 = V.alloc()
    vLane = V.alloc()
    vS = [vCs[1], vCs[1] + 1]
    vSS = [vCs[1] + 2, vCs[1] + 3]
    vARd = vB1[0]
    vOffA = [vB1[1], vB1[1] + 1]
    sX, sW, sB, sWS = 16, 20, 24, 28
    sWv, sA0, sAM, sDW, sM, sSt, sT, sT2, sOnes, sScale, sFb, sQc = 32, 33, 34, 35, 36, 37, 38, 39, 40, 41, 42, 43
    sXcd, sIdx, sS, sMt, sCl, sMb, sOwn = 44, 45, 46, 47, 48, 49, 53

    a("s_cmp_ge_u32 s2, 256")
    a("s_cbranch_scc1 k1_end")
    T = Stamps(0)
    T.start(a)
    a("s_load_dwordx4 s[4:7], s[0:1], 0")
    a("s_load_dwordx4 s[8:11], s[0:1], 32")
    a("s_load_dwordx2 s[12:13], s[0:1], 64")
    a("s_load_dwordx2 s[14:15], s[0:1], 88")
    t0, t1, t2, t3 = vT, vT + 1, vT + 2, vT + 3
    a(f"v_lshrrev_b32 v{vT}, 6, v0")
    a(f"v_and_b32 v{vLane}, 63, v0")
    a(f"v_readfirstlane_b32 s{sWv}, v{vT}")
    a(f"s_and_b32 s{sXcd}, s2, 7")
    a(f"s_lshr_b32 s{sIdx}, s2, 3")
    a(f"s_and_b32 s{sS}, s{sXcd}, 3")
    a(f"s_lshr_b32 s{sT}, s{sXcd}, 2")
    a(f"s_lshl_b32 s{sT}, s{sT}, 2")
    a(f"s_and_b32 s{sMt}, s{sIdx}, 3")
    a(f"s_add_u32 s{sMt}, s{sMt}, s{sT}")
    a(f"s_lshr_b32 s{sCl}, s{sIdx}, 2")
    a(f"v_lshrrev_b32 v{t0}, 3, v{vLane}")
    a(f"v_and_b32 v{t1}, 7, v{vLane}")
    a(f"v_lshrrev_b32 v{t2}, 1, v{t0}")
    a(f"v_xor_b32 v{t1}, v{t1}, v{t2}")
    a(f"v_mul_u32_u24 v{t0}, 1152, v{t0}")
    a(f"v_lshl_add_u32 v{vOffA[0]}, v{t1}, 4, v{t0}")
    a(f"v_xor_b32 v{vOffA[1]}, 64, v{vOffA[0]}")
    a(f"s_lshl_b32 s{sMb}, s{sMt}, 3")
    a(f"s_add_u32 s{sMb}, s{sMb}, s{sWv}")
    a(f"s_mul_i32 s{sA0}, s{sMb}, {32*1152}")
    a(f"s_lshl_b32 s{sAM}, s{sWv}, 13")
    a(f"s_add_u32 s{sAM}, s{sAM}, {K1_AR}")
    a(f"s_lshl_b32 s{sM}, s{sWv}, 10")
    a(f"s_mov_b32 s{sOnes}, 0x3f803f80")
    a.waitcnt(lg=0)
    srd(a, sX, 4, 5, 2048 * 1152)

    def a_dma(n):
        out = []
        for o in range(4):
            out += [f"s_add_u32 m0, s{sAM}, {(n % 2) * 4096 + o * 1024}",
                    f"s_add_u32 s{sT2}, s{sA0}, {o * 8 * 1152 + n * 128}",
                    (f"buffer_load_dwordx4 v{vOffA[o % 2]}, s[{sX}:{sX+3}], s{sT2} offen lds", f"A{n}")]
        return out

    PF = os.environ.get("PF") is not None
    if PF:
        a(f"s_lshr_b32 s{sT}, s{sXcd}, 2")
        a(f"s_mul_i32 s{sT}, s{sT}, {1024*1152}")
        a(f"s_mul_i32 s{sT2}, s{sIdx}, {288*128}")
        a(f"s_add_u32 s{sT}, s{sT}, s{sT2}")
        a(f"v_subrev_u32 v{t0}, 192, v0")
        a(f"v_cmp_gt_u32 s[50:51], 288, v{t0}") if False else None
        a(f"s_movk_i32 s52, 288")
        a(f"v_cmp_gt_u32 s[50:51], s52, v{t0}")
        a(f"v_lshlrev_b32 v{t0}, 7, v{t0}")
        a(f"v_mov_b32 v{t1}, {hx(OOB)}")
        a(f"v_cndmask_b32 v{t0}, v{t1}, v{t0}, s[50:51]")
        a(f"buffer_load_dword v{vSel}, v{t0}, s[{sX}:{sX+3}], s{sT} offen")
    emit_list(a, a_dma(0) + a_dma(1))

    def w_prefetch(pitch, colbase_s, nlines):
        if not PF:
            return
        a(f"s_and_b32 s{sT}, s{sMt}, 3")
        a(f"s_mul_i32 s{sT}, s{sT}, {144*pitch}")
        a(f"s_add_u32 s{sT}, s{sT}, s{colbase_s}")
        a(f"s_movk_i32 s52, 144")
        a(f"v_cmp_gt_u32 s[50:51], s52, v0")
        a(f"v_mul_u32_u24 v{t2}, {pitch}, v0")
        a(f"v_mov_b32 v{t1}, {hx(OOB)}")
        a(f"v_cndmask_b32 v{t2}, v{t1}, v{t2}, s[50:51]")
        for i in range(nlines):
            a(f"buffer_load_dword v{vSel+1+(i%3)}, v{t2}, s[{sW}:{sW+3}], s{sT} offen offset:{128*i}")
    a(f"v_lshrrev_b32 v{vE}, 5, v{vLane}")
    a(f"v_bfe_u32 v{t0}, v{vLane}, 2, 2")
    a(f"v_and_b32 v{t3}, 3, v{vLane}")
    a(f"v_bfe_u32 v{t2}, v{vLane}, 4, 1")
    a(f"v_lshlrev_b32 v{vCsRd}, 6, v{t0}")
    a(f"v_lshl_add_u32 v{vCsRd}, v{t3}, 3, v{vCsRd}")
    a(f"v_lshl_add_u32 v{vRd[0][0]}, v{t2}, 5, v{vCsRd}")
    a(f"v_lshl_add_u32 v{vRd[0][0]}, v{vE}, 11, v{vRd[0][0]}")
    a(f"v_lshl_add_u32 v{t0}, v{vE}, 2, v{t0}")
    a(f"v_lshlrev_b32 v{vOffB}, 6, v{t2}")
    a(f"v_lshl_add_u32 v{vOffB}, v{t3}, 4, v{vOffB}")
    a(f"s_cmp_ge_u32 s{sCl}, 6")
    a("s_cbranch_scc1 k1_qkv")
    st_branch = a.save()

    def common_late():
        code_prefetch(a, t0, vCsAcc, 50, 52, "k1_code_end", 512, "k1_here%d" % len(a.out), nrep=2, begin="k1_kernel")
        srd(a, sWS, 14, 15, WS_SIZE)
        a(f"v_and_b32 v{t0}, 31, v{vLane}")
        a(f"v_bfe_u32 v{t1}, v{t0}, 1, 3")
        a(f"v_lshlrev_b32 v{t2}, 1, v{vE}")
        a(f"v_xor_b32 v{t1}, v{t1}, v{t2}")
        a(f"v_lshlrev_b32 v{t1}, 4, v{t1}")
        a(f"v_lshl_add_u32 v{t1}, v{t0}, 7, v{t1}")
        a(f"v_add_u32 v{vARd}, s{sAM}, v{t1}")
        a(f"v_xor_b32 v{vARd+1}, 16, v{vARd}")
        a(f"v_xor_b32 v{vARd+2}, 64, v{vARd}")
        a(f"v_xor_b32 v{vARd+3}, 80, v{vARd}")
        a(f"v_add_u32 v{vRd[0][1]}, 36864, v{vRd[0][0]}")
        a(f"v_add_u32 v{vRd[1][0]}, {K1_STAGE}, v{vRd[0][0]}")
        a(f"v_add_u32 v{vRd[1][1]}, {K1_STAGE + 36864}, v{vRd[0][0]}")
        a(f"v_lshlrev_b32 v{vSt}, 4, v{vLane}")

    def a_reads(n):
        return [f"ds_read_b128 {v(vA + 16*n + 4*i, 4)}, v{vARd + i} offset:{(n % 2) * 4096}" for i in range(4)]

    def dma(p, n, pitch):
        return [f"s_add_u32 m0, s{sM}, {(p % 2) * K1_STAGE + n * 8192}",
                f"s_add_u32 s{sT}, s{sDW}, {p * 128 + n * 64 * pitch}",
                (f"buffer_load_dwordx4 v{vOffB}, s[{sW}:{sW+3}], s{sT} offen lds", f"D{p}")]

    def dma_own1(pitch, half):
        out = []
        for i in range(4 * half, 4 * half + 4):
            out += [f"s_add_u32 m0, s{sAM}, {i * 1024}",
                    f"s_add_u32 s{sT}, s{sOwn}, {i * 8 * pitch}",
                    (f"buffer_load_dwordx4 v{vOffB}, s[{sW}:{sW+3}], s{sT} offen lds", "D1")]
        return out

    def own_setup(pitch):
        a(f"s_mul_i32 s{sOwn}, s{sWv}, {56 * pitch}")
        a(f"s_add_u32 s{sOwn}, s{sOwn}, s{sDW}")
        a(f"s_add_u32 s{sOwn}, s{sOwn}, {64 * pitch + 128}")

    def dma_stage(p, pitch):
        return sum((dma(p, n, pitch) for n in range(9)), [])

    def b_reads(j, m, slot, base=None):
        if base is None:
            base = vB
        p, blk = j // 2, j % 2
        t, vv = m // 2, m % 2
        o = (4 * t + vv) * 1024 + blk * 256
        hi = 1 if o >= 36864 else 0
        o -= hi * 36864
        return [f"ds_read_b64_tr_b16 {v(base + 4*slot + 2*z, 2)}, v{vRd[p % 2][hi]} offset:{o + 512*z}" for z in range(2)]

    def mfma(j, m, slot, ac, base=None):
        if base is None:
            base = vB
        return f"{MF32} {v(ac, 16)}, {v(base + 4*slot, 4)}, {v(vA + 4*m, 4)}, {'0' if m == 0 else v(ac, 16)}"

    def first_reads(j):
        return sum((b_reads(j, f, f % RB) for f in range(RB - 1)), [])

    def block_main(j, ac, nxt=None):
        out = []
        for m in range(36):
            f = m + RB - 1
            if f < 36:
                out += b_reads(j, f, f % RB)
            elif nxt is not None:
                out += b_reads(nxt, f - 36, f % RB)
            out.append(mfma(j, m, m % RB, ac))
        return out

    def spread(fill, extra, group=3):
        ng = (len(extra) + group - 1) // group
        if ng == 0:
            return fill
        step = max(1, len(fill) // (ng + 1))
        out, k = [], 0
        for i, e in enumerate(fill):
            out.append(e)
            if (i + 1) % step == 0 and k < ng:
                out += extra[group * k:group * k + group]
                k += 1
        out += extra[group * k:]
        return out

    pitch = 9216
    srd(a, sW, 8, 9, 576 * 9216)
    srd(a, sB, 10, 11, 4608 * 2)
    a(f"s_mul_i32 s{sQc}, s{sS}, 6")
    a(f"s_add_u32 s{sQc}, s{sQc}, s{sCl}")
    a(f"s_mul_i32 s{sDW}, s{sWv}, {8 * pitch}")
    a(f"s_mul_i32 s{sFb}, s{sQc}, 384")
    a(f"s_add_u32 s{sDW}, s{sDW}, s{sFb}")
    a(f"v_mul_u32_u24 v{t0}, {pitch}, v{t0}")
    a(f"v_add_u32 v{vOffB}, v{vOffB}, v{t0}")
    w_prefetch(pitch, sFb, 3)
    emit_list(a, dma_stage(0, pitch))
    a(f"v_lshlrev_b32 v{t2}, 1, v0")
    a(f"buffer_load_ushort v{vCsAcc+2}, v{t2}, s[{sB}:{sB+3}], s{sFb} offen")
    common_late()
    a(f"s_mul_i32 s{sSt}, s{sMb}, 288")
    a(f"s_mul_i32 s{sT}, s{sQc}, 12")
    a(f"s_add_u32 s{sSt}, s{sSt}, s{sT}")
    a(f"s_lshl_b32 s{sSt}, s{sSt}, 10")
    a(f"s_and_b32 s{sT2}, s{sWv}, 3")
    a(f"s_lshr_b32 s{sT}, s{sT2}, 1")
    a(f"s_lshl_b32 s{sT}, s{sT}, 8")
    a(f"s_and_b32 s{sFb}, s{sWv}, 1")
    a(f"s_lshl_b32 s{sFb}, s{sFb}, 5")
    a(f"s_add_u32 s{sT}, s{sT}, s{sFb}")
    a(f"v_lshrrev_b32 v{t0}, 4, v{vLane}")
    a(f"v_lshl_add_u32 v{vCsRd}, v{t0}, 10, v{vCsRd}")
    a(f"v_add_u32 v{vCsRd}, s{sT}, v{vCsRd}")
    a(f"s_lshl_b32 s{sT2}, s{sT2}, 6")
    a(f"s_add_u32 s{sT2}, s{sT2}, {K1_CS}")
    a(f"v_and_b32 v{vCsA}, 15, v{vLane}")
    a(f"v_lshl_add_u32 v{vCsA}, v{vCsA}, 2, s{sT2}")
    a(f"v_lshlrev_b32 v{vE}, 4, v{vE}")
    a(f"v_add_u32 v{vE}, {K1_CS}, v{vE}")
    for i in range(4):
        a(f"v_mov_b32 v{vSel+i}, s{sOnes}")
    a(f"v_mov_b32 v{vC2}, {hx(f2u(GC2))}")
    for r in vS + vSS:
        a(f"v_mov_b32 v{r}, 0")

    own_setup(pitch)

    def stats(n):
        o, k = [], 0
        for r in range(vA + 16 * n, vA + 16 * n + 16):
            o.append(f"v_dot2_f32_bf16 v{vS[k]}, v{r}, s{sOnes}, v{vS[k]}")
            o.append(f"v_dot2_f32_bf16 v{vSS[k]}, v{r}, v{r}, v{vSS[k]}")
            k ^= 1
        return o

    def a_step(n):
        a.wait_tag(f"A{n}")
        emit_list(a, a_reads(n))

    def a_refill(n, nlater=0):
        a.waitcnt(lg=nlater)
        if n + 2 < 9:
            emit_list(a, a_dma(n + 2))
            if n == 5:
                emit_list(a, dma(1, 0, pitch))
        else:
            emit_list(a, dma_own1(pitch, n % 2))

    def cs_rd(m):
        return [f"ds_read_b64_tr_b16 {v(vCsF[m % 2] + 2*z, 2)}, v{vCsRd} offset:{m*4096 + z*512}" for z in range(2)]

    def cs_mf(m):
        return f"{MF16} {v(vCsAcc, 4)}, {v(vSel, 4)}, {v(vCsF[m % 2], 4)}, {'0' if m == 0 else v(vCsAcc, 4)}"

    def colsum():
        out = cs_rd(0) + ["s_nop 0"] + cs_rd(1) + ["s_nop 0"]
        for m in range(18):
            out.append(cs_mf(m))
            if m + 2 < 18:
                r = cs_rd(m + 2)
                if m + 2 >= 9:
                    r = [x.replace(f"offset:{(m+2)*4096 + z*512}", f"offset:{(m+2-9)*4096 + z*512}") for z, x in enumerate(r)]
                if m + 2 == 9:
                    r = [f"v_add_u32 v{vCsRd}, 36864, v{vCsRd}"] + r
                    out += r[:2]
                    out += [r[2], "s_nop 0", "s_nop 0"]
                    continue
                out += r
            else:
                out += ["s_nop 0", "s_nop 0"]
        return out

    def colsum_fin(p):
        d = (K1_STAGE if p % 2 == 0 else -K1_STAGE) - 36864
        return [f"ds_write_b32 v{vCsA}, v{vCsAcc} offset:{p*256}",
                f"v_add_u32 v{vCsRd}, {hx(d)}, v{vCsRd}"]

    T(a)
    for n in range(2):
        a_step(n)
        a_refill(n)
        emit_list(a, stats(n))
    a(f"v_lshlrev_b32 v{t2}, 2, v0")
    a(f"v_add_u32 v{t2}, {K1_CS}, v{t2}")
    a(f"v_lshlrev_b32 v{t3}, 16, v{vCsAcc+2}")
    a(f"ds_write_b32 v{t2}, v{t3} offset:2048")
    a.wait_tag("D0")
    a("s_barrier")
    T(a)
    bm = block_main(0, acc[0], 1)
    emit_list(a, first_reads(0))
    per = []
    cur = []
    for e in bm:
        cur.append(e)
        if e.startswith("v_mfma"):
            per.append(cur)
            cur = []
    done = 0
    cs0 = colsum()
    cs0 = [[x for x in cs0[i:i+3] if x != "s_nop 0"] for i in range(0, len(cs0), 3)]
    for n in range(2, 9):
        a_step(n)
        upto = 4 * n if n > 2 else 8
        for m in range(done, upto):
            emit_list(a, per[m])
            if m == done + 1:
                a_refill(n, nlater=4)
            elif cs0 and m > done + 1:
                emit_list(a, cs0.pop(0))
        done = upto
        st = stats(n)
        emit_list(a, st[:16])
        if cs0:
            emit_list(a, cs0.pop(0))
        emit_list(a, st[16:])
        if n in (4,):
            T(a)
    for m in range(done, 36):
        emit_list(a, per[m])
        if cs0:
            emit_list(a, cs0.pop(0))
    assert not cs0
    T(a)

    def stats_fin():
        o = []
        for (x, y) in ((vS, t0), (vSS, t2)):
            o.append(f"v_add_f32 v{y}, v{x[0]}, v{x[1]}")
            o.append(f"v_mov_b32 v{y+1}, v{y}")
        o.append(f"v_permlane32_swap_b32 v{t0}, v{t1}")
        o.append(f"v_permlane32_swap_b32 v{t2}, v{t3}")
        o.append(f"v_add_f32 v{t0}, v{t0}, v{t1}")
        o.append(f"v_add_f32 v{t2}, v{t2}, v{t3}")
        o.append(f"v_mul_f32 v{t0}, {hx(f2u(1.0/576))}, v{t0}")
        o.append(f"v_mul_f32 v{t2}, {hx(f2u(1.0/576))}, v{t2}")
        o.append(f"v_fma_f32 v{t2}, -v{t0}, v{t0}, v{t2}")
        o.append(f"v_max_f32 v{t2}, 0, v{t2}")
        o.append(f"v_add_f32 v{t2}, {hx(f2u(1e-5))}, v{t2}")
        o.append(f"v_rsq_f32 v{vRstd}, v{t2}")
        o.append(f"v_mul_f32 v{vNrm}, -v{t0}, v{vRstd}")
        return o

    def epi_mlp(j, ac):
        o = []

        def rd(g):
            return [f"ds_read_b128 {v(vCs[g % 2], 4)}, v{vE} offset:{128*j + 32*g}",
                    f"ds_read_b128 {v(vB1[g % 2], 4)}, v{vE} offset:{2048 + 128*j + 32*g}"]
        o += rd(0) + rd(1)
        for g in range(4):
            c, b, x = vCs[g % 2], vB1[g % 2], ac + 4 * g
            o += [f"v_fma_f32 v{c+e}, v{vNrm}, v{c+e}, v{b+e}" for e in range(4)]
            o += [f"v_fma_f32 v{x+e}, v{x+e}, v{vRstd}, v{c+e}" for e in range(4)]
            if g + 2 < 4:
                o += rd(g + 2)
            o += [f"v_mul_f32 v{vT+e}, v{x+e}, v{x+e}" for e in range(4)]
            o += [f"v_fmaak_f32 v{vT+e}, v{vT+e}, v{vC2}, {hx(f2u(GC1))}" for e in range(4)]
            o += [f"v_mul_f32 v{vT+e}, v{vT+e}, v{x+e}" for e in range(4)]
            o += [f"v_exp_f32 v{vT+e}, v{vT+e}" for e in range(4)]
            o += [f"v_add_f32 v{vT+e}, 1.0, v{vT+e}" for e in range(4)]
            o += [f"v_rcp_f32 v{vT+e}, v{vT+e}" for e in range(4)]
            o += [f"v_mul_f32 v{x+e}, v{x+e}, v{vT+e}" for e in range(4)]
            d = ac + 8 * (g // 2) + 2 * (g % 2)
            o += [f"v_cvt_pk_bf16_f32 v{d+e}, v{x+2*e}, v{x+2*e+1}" for e in range(2)]
            if g % 2 == 1:
                o.append((f"buffer_store_dwordx4 {v(ac + 8*(g//2), 4)}, v{vSt}, s[{sWS}:{sWS+3}], s{sSt} offen offset:{(g//2)*1024}", "ST"))
        o.append(f"s_add_u32 s{sSt}, s{sSt}, 2048")
        return o

    def after_arrival(role):
        emit_list(a, stats_fin())
        emit_list(a, colsum_fin(0))
        a.waitcnt(lg=0)
        a("s_barrier")

    CSROLE = int(os.environ.get("CSROLE", "0"))

    def weave(main, csl):
        groups = [[x for x in csl[i:i+3] if x != "s_nop 0"] for i in range(0, len(csl), 3)]
        out, nm = [], 0
        for e in main:
            out.append(e)
            t = e[0] if isinstance(e, tuple) else e
            if t.startswith(MF32):
                nm += 1
                if groups and nm % 3 != 0:
                    out += groups.pop(0)
        for g in groups:
            out += g
        return out

    def interval(role, j):
        extra = []
        if j == 2:
            extra = dma_stage(2, pitch)
        E = epi_mlp(j - 1, acc[(j - 1) % 2])
        csl = colsum() if (j % 2 == 0 and role == CSROLE) else []
        newstage = (j % 2 == 0)
        nxt = j + 1 if (j % 2 == 0 and j < 5) else None
        if SCHEME == "u":
            main = block_main(j, acc[j % 2], nxt)
            if newstage:
                main = first_reads(j) + main
            fill = spread(spread(E, csl), extra)
            emit_list(a, merge(main, fill, budget=22, start=1))
        elif role == 0:
            E2 = spread(E, extra)
            if newstage:
                E2 = E2[:-8] + first_reads(j) + E2[-8:]
            emit_list(a, E2)
            a("s_setprio 1")
            emit_list(a, weave(block_main(j, acc[j % 2], nxt), csl))
            a("s_setprio 0")
        else:
            a("s_setprio 1")
            main = block_main(j, acc[j % 2], None)
            if newstage:
                main = first_reads(j) + main
            emit_list(a, weave(merge(main, extra, budget=3, start=2), csl))
            a("s_setprio 0")
            E2 = E
            if nxt is not None:
                E2 = E2[:-8] + first_reads(nxt) + E2[-8:]
            emit_list(a, E2)
        if csl:
            emit_list(a, colsum_fin(j // 2))
        if j < 5:
            if j == 1:
                a.wait_tag("D1")
            if j == 3:
                a.wait_tag("D2")
            a.waitcnt(lg=(0 if j % 2 == 0 else None))
            a("s_barrier")

    def mlp_rest(role):
        after_arrival(role)
        for j in range(1, 6):
            T(a)
            interval(role, j)
        T(a)
        emit_list(a, epi_mlp(5, acc[1]))
        T.dump(a, sWS, sWv, 8, vT)
        a("s_endpgm")

    if True:
        a(f"s_cmp_ge_u32 s{sWv}, 4")
        a("s_cbranch_scc1 k1_mlp_r1")
        st_r = a.save()
        nr = T.n
        mlp_rest(0)
        a.label("k1_mlp_r1")
        a.restore(st_r)
        T.n = nr
        mlp_rest(1)

    a.label("k1_qkv")
    a.restore(st_branch)
    T.n = 1
    pitch = 3456
    srd(a, sW, 6, 7, 576 * 3456)
    srd(a, sB, 12, 13, 576 * 2)
    a(f"s_lshl_b32 s{sQc}, s{sS}, 1")
    a(f"s_add_u32 s{sQc}, s{sQc}, s{sCl}")
    a(f"s_sub_u32 s{sQc}, s{sQc}, 6")
    a(f"s_mul_i32 s{sFb}, s{sQc}, 7")
    a(f"s_min_u32 s{sFb}, s{sFb}, 48")
    a(f"s_mul_i32 s{sDW}, s{sWv}, {8 * pitch}")
    a(f"s_lshl_b32 s{sT}, s{sFb}, 6")
    a(f"s_add_u32 s{sDW}, s{sDW}, s{sT}")
    a(f"v_mul_u32_u24 v{t0}, {pitch}, v{t0}")
    a(f"v_add_u32 v{vOffB}, v{vOffB}, v{t0}")
    a(f"s_lshl_b32 s{sScale}, s{sFb}, 6")
    w_prefetch(pitch, sScale, 3)
    emit_list(a, dma_stage(0, pitch))
    common_late()
    a(f"s_mul_i32 s{sSt}, s{sMb}, 108")
    a(f"s_lshl_b32 s{sT}, s{sFb}, 1")
    a(f"s_add_u32 s{sSt}, s{sSt}, s{sT}")
    a(f"s_lshl_b32 s{sSt}, s{sSt}, 10")
    a(f"s_add_u32 s{sSt}, s{sSt}, {hx(QKV_OFF)}")
    vB2 = vCsF[0]
    own_setup(pitch)
    T(a)
    for n in range(2):
        a_step(n)
        a_refill(n)
    a.wait_tag("D0")
    a("s_barrier")
    T(a)
    def rd2(f):
        return b_reads(f % 2, f // 2, f % RB)
    for f in range(RB - 1):
        emit_list(a, rd2(f))
    def step2(f):
        if f + RB - 1 < 72:
            emit_list(a, rd2(f + RB - 1))
        a(mfma(f % 2, f // 2, f % RB, acc[f % 2]))
    done = 0
    for n in range(2, 9):
        a_step(n)
        upto = 8 * n if n > 2 else 16
        for f in range(done, upto):
            step2(f)
            if f == done + 1:
                a_refill(n, nlater=4)
        done = upto
        if n in (4,):
            T(a)
    for f in range(done, 72):
        step2(f)
    T(a)

    def epi_qkv(j, ac):
        o = [f"s_add_u32 s{sT2}, s{sFb}, {j}",
             f"s_cmp_lt_u32 s{sT2}, 18",
             f"s_cselect_b32 s{sScale}, {hx(f2u(QSCALE))}, 1.0"]
        for i in range(16):
            o.append(f"v_mul_f32 v{ac+i}, s{sScale}, v{ac+i}")
        for u in range(2):
            o += [f"v_cvt_pk_bf16_f32 v{ac+8*u+e}, v{ac+8*u+2*e}, v{ac+8*u+2*e+1}" for e in range(4)]
            o.append((f"buffer_store_dwordx4 {v(ac + 8*u, 4)}, v{vSt}, s[{sWS}:{sWS+3}], s{sSt} offen offset:{u*1024}", "ST"))
        o.append(f"s_add_u32 s{sSt}, s{sSt}, 2048")
        return o

    emit_list(a, epi_qkv(0, acc[0]))
    a.wait_tag("D1")
    a("s_barrier")
    emit_list(a, first_reads(2))
    st6 = None
    for j in range(2, 7):
        if j == 6:
            a(f"s_cmp_ge_u32 s{sQc}, 6")
            a("s_cbranch_scc1 k1_tail6")
            st6 = a.save()
            n6 = T.n
        T(a)
        main = block_main(j, acc[j % 2], j + 1 if j < 6 else None)
        fill = epi_qkv(j - 1, acc[(j - 1) % 2])
        if j == 2:
            fill += dma_stage(2, pitch)
        if j == 4:
            fill += dma_stage(3, pitch)
        emit_list(a, merge(main, fill, budget=12, start=1))
        if j == 2:
            a.wait_tag("D2")
            a("s_barrier")
        if j == 3:
            a("s_barrier")
        if j == 4:
            a.wait_tag("D3")
            a("s_barrier")
    emit_list(a, epi_qkv(6, acc[0]))
    T.dump(a, sWS, sWv, 8, vT)
    a("s_endpgm")

    a.label("k1_tail6")
    a.restore(st6)
    emit_list(a, epi_qkv(5, acc[1]))
    T.n = n6
    T.dump(a, sWS, sWv, 8, vT)
    a(f"s_cmp_lg_u32 s{sQc}, 7")
    a("s_cbranch_scc1 k1_flags")
    st7 = a.save()
    a(f"v_lshrrev_b32 v{t0}, 5, v{vLane}")
    a(f"v_lshlrev_b32 v{t0}, 5, v{t0}")
    a(f"v_mov_b32 v{t2}, 0")
    a(f"v_mov_b32 v{t3}, 0")
    gbuf = [acc[0] + 4 * i for i in range(4)] + [vB + 4 * i for i in range(4)] + [vB2 + 4 * i for i in range(4)]
    for base in range(0, 36, 12):
        for i in range(12):
            m = base + i
            a(f"buffer_load_dwordx4 {v(gbuf[i], 4)}, v{t0}, s[{sB}:{sB+3}], 0 offen offset:{64*(m//2) + 16*(m%2)}")
        for i in range(12):
            m = base + i
            for e in range(4):
                r = t2 + (e % 2)
                a(f"v_dot2_f32_bf16 v{r}, v{vA + 4*m + e}, v{gbuf[i] + e}, v{r}")
    a(f"v_add_f32 v{t2}, v{t2}, v{t3}")
    a(f"v_mov_b32 v{t3}, v{t2}")
    a(f"v_permlane32_swap_b32 v{t2}, v{t3}")
    a(f"v_add_f32 v{t2}, v{t2}, v{t3}")
    a(f"v_mul_f32 v{t2}, {hx(f2u(-LOG2E))}, v{t2}")
    a(f"v_exp_f32 v{t2}, v{t2}")
    a(f"v_add_f32 v{t2}, 1.0, v{t2}")
    a(f"v_rcp_f32 v{t2}, v{t2}")
    a(f"v_and_b32 v{t0}, 31, v{vLane}")
    a(f"v_lshlrev_b32 v{t0}, 2, v{t0}")
    a(f"s_lshl_b32 s{sT}, s{sMb}, 7")
    a(f"s_add_u32 s{sT}, s{sT}, {hx(G_OFF)}")
    a(f"buffer_store_dword v{t2}, v{t0}, s[{sWS}:{sWS+3}], s{sT} offen")
    a("s_endpgm")
    a.label("k1_flags")
    a.restore(st7)
    a(f"s_cmp_lg_u32 s{sMb}, 0")
    a("s_cbranch_scc1 k1_end")
    a(f"v_lshlrev_b32 v{t0}, 7, v{vLane}")
    a(f"v_mov_b32 v{t2}, 0")
    a(f"s_mov_b32 s{sT}, {hx(F_OFF)}")
    a(f"buffer_store_dword v{t2}, v{t0}, s[{sWS}:{sWS+3}], s{sT} offen")
    a.label("k1_end")
    a("s_endpgm")
    a.label("k1_code_end")
    return V.hi


HEADER = """; Kernarg layout for this problem (96 bytes, ptrs only, base s[0:1]):
"""


def main(out, kernels=("k1",)):
    a = Asm()
    launches = []
    descs = []
    body = []
    if "k1" in kernels:
        a = Asm()
        nv = gen_k1(a)
        launches.append(f"; @launch kernel=k1_kernel grid=(256,1,1) block=(512,1,1) lds={K1_LDS}")
        descs.append(kernel_desc("k1_kernel", nv))
        body.append(a.text())
        print("k1: vgprs", nv, a.stats, file=sys.stderr)
    import gen2
    if gen2 is not None:
        for kn in kernels:
            if kn == "k1":
                continue
            a = Asm()
            nv, launch = getattr(gen2, "gen_" + kn)(a)
            launches.append(launch)
            descs.append(kernel_desc(kn + "_kernel", nv))
            body.append(a.text())
            print(kn, ": vgprs", nv, a.stats, file=sys.stderr)
    txt = HEADER + "\n".join(launches) + "\n" + '.amdgcn_target "amdgcn-amd-amdhsa--gfx950"\n.text\n' + "".join(body) + "".join(descs)
    open(out, "w").write(txt)


if __name__ == "__main__":
    sys.modules["gen"] = sys.modules["__main__"]
    out = sys.argv[1] if len(sys.argv) > 1 else f"cdna_kernels/{NAME}.s"
    ks = sys.argv[2].split(",") if len(sys.argv) > 2 else ["k1"]
    main(out, ks)
```

```python
import os
from asmlib import *
from gen import *
import gen

K2_STAGE = 18432
K2_NS = 4
K2_VB = 36864
K2_VS = 3584
K2_LDS = 81920


def decode_k2(a, src, sXcd, sIdx, sS, sI, sJ, sT):
    a(f"s_and_b32 s{sXcd}, s{src}, 7")
    a(f"s_lshr_b32 s{sIdx}, s{src}, 3")
    a(f"s_and_b32 s{sIdx}, s{sIdx}, 31")
    a(f"s_and_b32 s{sS}, s{sXcd}, 3")
    a(f"s_lshr_b32 s{sT}, s{sXcd}, 2")
    a(f"s_lshl_b32 s{sT}, s{sT}, 3")
    a(f"s_and_b32 s{sI}, s{sIdx}, 7")
    a(f"s_add_u32 s{sI}, s{sI}, s{sT}")
    a(f"s_lshr_b32 s{sJ}, s{sIdx}, 3")


def gen_k2(a):
    L = "k2_kernel"
    a.raw(".p2align 8")
    a.raw(f".globl {L}")
    a.raw(f".type {L},@function")
    a.label(L)
    sW2, sWO, sB2, sWS = 16, 20, 24, 28
    sWv, sXcd, sIdx, sS, sI, sJ, sT, sT2, sMb = 32, 33, 34, 35, 36, 37, 38, 39, 40
    a("s_cmp_ge_u32 s2, 512")
    a("s_cbranch_scc1 k2_end")
    T = Stamps(1, base=64, n=14)
    T.start(a)
    a("s_load_dwordx2 s[4:5], s[0:1], 16")
    a("s_load_dwordx4 s[8:11], s[0:1], 48")
    a("s_load_dwordx2 s[14:15], s[0:1], 88")
    vLane, vL16 = 1, 2
    a("v_lshrrev_b32 v3, 6, v0")
    a(f"v_and_b32 v{vLane}, 63, v0")
    a(f"v_readfirstlane_b32 s{sWv}, v3")
    decode_k2(a, 2, sXcd, sIdx, sS, sI, sJ, sT)
    a(f"v_lshlrev_b32 v{vL16}, 4, v{vLane}")
    a(f"s_lshl_b32 s{sMb}, s{sI}, 2")
    a(f"s_add_u32 s{sMb}, s{sMb}, s{sWv}")
    a.waitcnt(lg=0)
    srd(a, sWS, 14, 15, gen.WS_SIZE)
    a("s_cmp_ge_u32 s2, 256")
    a("s_cbranch_scc1 k2_gemm")
    st0 = a.save()
    hi_a = gen_attn(a, T, locals())
    a.label("k2_gemm")
    a.restore(st0)
    T.n = 1
    hi_g = gen_gemm(a, T, locals())
    a.label("k2_end")
    a("s_endpgm")
    a.label("k2_code_end")
    return max(hi_a, hi_g), f"; @launch kernel=k2_kernel grid=(512,1,1) block=(256,1,1) lds={K2_LDS}"


def gen_attn(a, T, E):
    sWS, sWv, sS, sI, sJ, sT, sT2, sMb = (E[k] for k in ("sWS", "sWv", "sS", "sI", "sJ", "sT", "sT2", "sMb"))
    vLane, vL16 = E["vLane"], E["vL16"]
    V = Regs("v", 3, 256)
    vS = V.alloc(144, 4)
    vO = V.alloc(16, 4)
    vR = V.alloc(24, 4)
    vQ = V.alloc(12, 4)
    vQm = V.alloc(8, 4)
    vM = V.alloc(8, 4)
    vKeep = V.alloc(4, 4)
    vVa = V.alloc(4, 4)
    vT = V.alloc(4, 4)
    vKa = V.alloc()
    vVoff = V.alloc()
    vHH4 = V.alloc()
    vG = V.alloc()
    vMx = [V.alloc(), V.alloc()]
    vVb = V.alloc()
    vOne = V.alloc()
    vNeg = V.alloc()
    vDum = V.alloc()
    t0, t1, t2, t3 = vT, vT + 1, vT + 2, vT + 3
    sQ0, sBk, sM0, sOff, sMask, sOst = 41, 42, 43, 44, 46, 45
    sMk = 8
    MK = 48 if not STAMP else 48
    def mk(i):
        if not STAMP:
            return 48 + 2 * i
        pool = [4, 6, 8, 10, 12, 16, 18, 20, 22, 24, 26, 48, 50, 52, 60, 62]
        return pool[i]

    a(f"s_mul_i32 s{sQ0}, s{sS}, 9")
    a(f"s_lshl_b32 s{sT}, s{sJ}, 1")
    a(f"s_add_u32 s{sQ0}, s{sQ0}, s{sT}")
    a(f"v_lshrrev_b32 v{t0}, 1, v{vLane}")
    a(f"v_and_b32 v{t1}, 1, v{vLane}")
    a(f"v_lshl_add_u32 v{t0}, v{t1}, 5, v{t0}")
    a(f"v_lshlrev_b32 v{vVoff}, 4, v{t0}")
    a(f"s_mul_i32 s{sT}, s{sMb}, 108")
    a(f"s_add_u32 s{sT}, s{sT}, s{sQ0}")
    a(f"s_lshl_b32 s{sT}, s{sT}, 10")
    a(f"s_add_u32 s{sT}, s{sT}, {hx(QKV_OFF)}")
    for u in range(3):
        a(f"buffer_load_dwordx4 {v(vQ + 4*u, 4)}, v{vL16}, s[{sWS}:{sWS+3}], s{sT} offen offset:{u*1024}")
    sB = [4, 5, 6]
    for b in range(3):
        a(f"s_mul_i32 s{sT}, s{sWv}, 3")
        a(f"s_lshl_b32 s{sT2}, s{sI}, 2")
        a(f"s_add_u32 s{sT}, s{sT}, s{sT2}")
        a(f"s_add_i32 s{sT}, s{sT}, {b - 8}")
        a(f"s_mul_i32 s{sT2}, s{sT}, 108")
        a(f"s_add_u32 s{sT2}, s{sT2}, s{sQ0}")
        a(f"s_lshl_b32 s{sT2}, s{sT2}, 10")
        a(f"s_add_u32 s{sT2}, s{sT2}, {hx(QKV_OFF + 36 * 1024)}")
        a(f"s_cmp_lt_i32 s{sT}, 0")
        a(f"s_cselect_b32 s{sB[b]}, {hx(OOB)}, s{sT2}")
    a(f"s_mul_i32 s{sM0}, s{sWv}, {3*3072}")
    for b in range(3):
        for u in range(3):
            a(f"s_add_u32 m0, s{sM0}, {b*3072 + u*1024}")
            a(f"s_add_u32 s{sT}, s{sB[b]}, {u*1024}")
            a(f"buffer_load_dwordx4 v{vL16}, s[{sWS}:{sWS+3}], s{sT} offen lds", "K")
    a(f"s_mul_i32 s{sM0}, s{sWv}, {3*K2_VS}")
    for b in range(3):
        for u in range(3):
            a(f"s_add_u32 m0, s{sM0}, {K2_VB + b*K2_VS + u*1152}")
            a(f"s_add_u32 s{sT}, s{sB[b]}, {(36 + u)*1024}")
            a(f"buffer_load_dwordx4 v{vVoff}, s[{sWS}:{sWS+3}], s{sT} offen lds", "V")
    a(f"v_and_b32 v{t0}, 31, v{vLane}")
    a(f"v_lshlrev_b32 v{t1}, 2, v{t0}")
    a(f"s_lshl_b32 s{sT}, s{sMb}, 7")
    a(f"s_add_u32 s{sT}, s{sT}, {hx(G_OFF)}")
    a(f"buffer_load_dword v{vG}, v{t1}, s[{sWS}:{sWS+3}], s{sT} offen")
    code_prefetch(a, t1, vDum, 8, 12, "all_code_end", E["sIdx"], "k2_hereA", begin="k2_kernel", lines=8)
    a(f"v_min_u32 v{t1}, 11, v{vLane}")
    a(f"v_mul_u32_u24 v{t1}, {K2_VS}, v{t1}")
    a(f"v_mov_b32 v{t2}, 0x3f803f80")
    a(f"v_mov_b32 v{t3}, 0x3f803f80")
    a(f"ds_write_b64 v{t1}, {v(t2, 2)} offset:{K2_VB + 3456}")
    a(f"v_lshrrev_b32 v{vHH4}, 5, v{vLane}")
    a(f"v_lshlrev_b32 v{vHH4}, 2, v{vHH4}")
    a(f"v_sub_u32 v{t0}, v{t0}, v{vHH4}")
    for i in range(16):
        c = 8 * (i // 4) + i % 4
        a(f"v_cmp_le_i32 s[{mk(i)}:{mk(i)+1}], {c}, v{t0}")
    a(f"v_mov_b32 v{t1}, 0xffff")
    a(f"v_mov_b32 v{t2}, 0xffff0000")
    for k in range(8):
        a(f"v_cndmask_b32 v{vM+k}, 0, v{t1}, s[{mk(2*k)}:{mk(2*k)+1}]")
        a(f"v_cndmask_b32 v{t3}, 0, v{t2}, s[{mk(2*k+1)}:{mk(2*k+1)+1}]")
        a(f"v_or_b32 v{vM+k}, v{vM+k}, v{t3}")
    a(f"s_mul_i32 s{sT}, s{sWv}, 3072")
    a(f"v_add_u32 v{vKa}, s{sT}, v{vL16}")
    a(f"v_bfe_u32 v{t0}, v{vLane}, 2, 2")
    a(f"v_add_u32 v{t0}, v{t0}, v{vHH4}")
    a(f"v_lshlrev_b32 v{vVb}, 5, v{t0}")
    a(f"v_and_b32 v{t0}, 1, v{vLane}")
    a(f"v_lshl_add_u32 v{vVb}, v{t0}, 4, v{vVb}")
    a(f"v_bfe_u32 v{t0}, v{vLane}, 1, 1")
    a(f"v_lshl_add_u32 v{vVb}, v{t0}, 3, v{vVb}")
    a(f"v_bfe_u32 v{t0}, v{vLane}, 4, 1")
    a(f"v_mul_u32_u24 v{t0}, 1152, v{t0}")
    a(f"v_add_u32 v{vVb}, v{vVb}, v{t0}")
    a(f"s_mul_i32 s{sT}, s{sWv}, {K2_VS}")
    a(f"s_add_u32 s{sT}, s{sT}, {K2_VB}")
    a(f"v_add_u32 v{vVb}, s{sT}, v{vVb}")
    a(f"s_add_u32 s{sT}, s{sT}, 3456")
    a(f"v_mov_b32 v{vOne}, s{sT}")
    a(f"s_cmp_eq_u32 s{sJ}, 3")
    a(f"s_cselect_b32 s{sT}, 0, 19")
    a(f"v_and_b32 v{t0}, 19, v{vLane}")
    a(f"v_cmp_eq_u32 s[{sMask}:{sMask+1}], s{sT}, v{t0}")
    a(f"v_mov_b32 v{vNeg}, 0xff7fffff")
    a(f"s_mul_i32 s{sOst}, s{sMb}, 36")
    a(f"s_add_u32 s{sOst}, s{sOst}, s{sQ0}")
    a(f"s_lshl_b32 s{sOst}, s{sOst}, 10")
    a(f"s_add_u32 s{sOst}, s{sOst}, {hx(O_OFF)}")
    T(a)
    a.wait_tag("K", want_lg=True)
    a("s_barrier")
    T(a)

    def S(n):
        return vS + 16 * n

    for hd in range(2):
        a.comment(f"---- head {hd}")

        order = [8, 0, 1, 2, 3, 4, 5, 6, 7]

        def kread2(i):
            n = order[i]
            return [f"ds_read_b128 {v(vR + 8*(i % 3) + 4*u, 4)}, v{vKa} offset:{n*3072 + (hd+u)*1024}" for u in range(2)]
        emit_list(a, kread2(0) + kread2(1))
        a(f"s_lshl_b32 s{sOff}, s{sJ}, 2")
        if hd:
            a(f"s_add_u32 s{sOff}, s{sOff}, 2")
        a(f"v_subrev_u32 v{t0}, s{sOff}, v{vHH4}")
        for u in range(2):
            for p in range(4):
                c0 = 16 * u + 8 * (p // 2) + 2 * (p % 2)
                tt = t1 + (p % 2)
                a(f"v_add_u32 v{tt}, {c0}, v{t0}")
                a(f"v_cmp_gt_u32 vcc, 18, v{tt}")
                a(f"v_cndmask_b32_e64 v{vQm + 4*u + p}, 0, v{vQ + 4*(hd+u) + p}, vcc")
        for tg in range(2):
            for z in range(2):
                i = 2 * tg + z
                a(f"v_add_u32 v{vVa+i}, {hd*1152 + (16*tg + 8*z)*32}, v{vVb}")
                a(f"v_cndmask_b32 v{vVa+i}, v{vVa+i}, v{vOne}, s[{sMask}:{sMask+1}]")
        a(f"v_mov_b32 v{vMx[0]}, v{vNeg}")
        a(f"v_mov_b32 v{vMx[1]}, v{vNeg}")

        def maxes(n):
            return [f"v_max3_f32 v{vMx[k % 2]}, v{S(n) + 2*k}, v{S(n) + 2*k + 1}, v{vMx[k % 2]}" for k in range(8)]
        for i in range(9):
            n = order[i]
            if i + 2 < 9:
                emit_list(a, kread2(i + 2))
            a(f"{MF32} {v(S(n), 16)}, {v(vR + 8*(i % 3), 4)}, {v(vQm, 4)}, 0")
            a(f"{MF32} {v(S(n), 16)}, {v(vR + 8*(i % 3) + 4, 4)}, {v(vQm + 4, 4)}, {v(S(n), 16)}")
        a(f"s_cmp_ge_u32 s{sMb}, 8")
        a(f"s_cbranch_scc1 k2_nofix{hd}")
        a.nop(12)
        for n in range(8):
            a(f"s_cmp_ge_u32 s{sMb}, {8 - n}")
            a(f"s_cbranch_scc1 k2_nofix{hd}")
            for i in range(16):
                a(f"v_mov_b32 v{S(n) + i}, v{vNeg}")
        a.label(f"k2_nofix{hd}")
        if hd == 0:
            a.wait_tag("V")
            a("s_barrier")
            T(a)

        def vread(n, tg, slot):
            return [f"ds_read_b64_tr_b16 {v(vR + 4*slot + 2*z, 2)}, v{vVa + 2*tg + z} offset:{n*K2_VS}" for z in range(2)]
        for i in range(16):
            a(f"v_cndmask_b32 v{S(8)+i}, v{S(0)+i}, v{S(8)+i}, s[{mk(i)}:{mk(i)+1}]")
        for n in (8, 1, 2, 3, 4, 5, 6, 7):
            emit_list(a, maxes(n))
        a(f"v_max_f32 v{t0}, v{vMx[0]}, v{vMx[1]}")
        a(f"v_mov_b32 v{t1}, v{t0}")
        seq = [(n, n) for n in range(1, 8)] + [(8, 8), (0, 0)]
        frs = [(vb, tg) for (_, vb) in seq for tg in range(2)]
        for f in range(4):
            emit_list(a, vread(frs[f][0], frs[f][1], f % 6))
        a(f"v_permlane32_swap_b32 v{t0}, v{t1}")
        a(f"v_max_f32 v{vMx[0]}, v{t0}, v{t1}")

        def soft(n):
            o = []
            for h2 in range(2):
                b = S(n) + 8 * h2
                o += [f"v_sub_f32 v{b+i}, v{b+i}, v{vMx[0]}" for i in range(8)]
                o += [f"v_exp_f32 v{b+i}, v{b+i}" for i in range(8)]
                o += [f"v_cvt_pk_bf16_f32 v{S(n) + 4*h2 + k}, v{b+2*k}, v{b+2*k+1}" for k in range(4)]
            return o

        def pv(idx):
            pb, vb = seq[idx]
            o = []
            for tg in range(2):
                f = 2 * idx + tg
                m = f"{MF32} {v(vO, 16)}, {v(vR + 4*(f % 6), 4)}, {v(S(pb) + 4*tg, 4)}, {'0' if f == 0 else v(vO, 16)}"
                nx = vread(frs[f + 4][0], frs[f + 4][1], (f + 4) % 6) if f + 4 < 18 else []
                o.append(nx + [m])
            return o
        emit_list(a, soft(1))
        for idx in range(8):
            nxt = seq[idx + 1][0]
            if nxt != 0:
                so = soft(nxt)
                if nxt == 8:
                    so += [f"v_bfi_b32 v{S(0)+k}, v{vM+k}, 0, v{S(8)+k}" for k in range(8)]
                    so += [f"v_and_b32 v{S(8)+k}, v{vM+k}, v{S(8)+k}" for k in range(8)]
                p = pv(idx)
                emit_list(a, so[:6] + p[0] + so[6:26] + p[1] + so[26:])
            else:
                p = pv(idx)
                emit_list(a, p[0] + p[1])
        p = pv(8)
        emit_list(a, p[0] + p[1])
        a(f"s_cmp_eq_u32 s{sJ}, 3")
        a(f"s_cselect_b64 vcc, -1, 0")
        a(f"v_cndmask_b32_e64 v{t0}, v{vO+12}, v{vO}, vcc")
        a(f"v_mov_b32 v{t1}, v{t0}")
        a(f"v_permlane32_swap_b32 v{t0}, v{t1}")
        a(f"v_cndmask_b32_e64 v{t0}, v{t1}, v{t0}, vcc")
        a(f"v_rcp_f32 v{t0}, v{t0}")
        a(f"v_mul_f32 v{t0}, v{t0}, v{vG}")
        for i in range(16):
            a(f"v_mul_f32 v{vO+i}, v{vO+i}, v{t0}")
        for k in range(8):
            a(f"v_cvt_pk_bf16_f32 v{vO+k}, v{vO+2*k}, v{vO+2*k+1}")
        a(f"s_lshl_b32 s{sOff}, s{sJ}, 2")
        a(f"v_mov_b32 v{t3}, {hx(OOB)}")
        if hd == 0:
            for pp in range(2):
                a(f"v_add_u32 v{t1}, {8*pp}, v{vHH4}")
                a(f"v_cmp_le_u32 vcc, s{sOff}, v{t1}")
                a(f"v_cndmask_b32_e64 v{t1+pp}, v{t3}, v{vL16}, vcc")
                a(f"buffer_store_dwordx2 {v(vO + 2*pp, 2)}, v{t1+pp}, s[{sWS}:{sWS+3}], s{sOst} offen offset:{8*pp} sc1")
            for k in range(4):
                a(f"v_mov_b32 v{vKeep+k}, v{vO+4+k}")
        else:
            for p in range(4):
                c0 = 8 * (p // 2) + 2 * (p % 2)
                a(f"v_add_u32 v{t1}, {c0 - 2}, v{vHH4}")
                a(f"v_cmp_gt_i32 vcc, s{sOff}, v{t1}")
                a(f"v_cndmask_b32_e64 v{vKeep+p}, v{vO+p}, v{vKeep+p}, vcc")
            a(f"buffer_store_dwordx4 {v(vKeep, 4)}, v{vL16}, s[{sWS}:{sWS+3}], s{sOst} offen offset:1024 sc1")
            for pp in range(2):
                a(f"v_add_u32 v{t1}, {8*pp - 4}, v{vHH4}")
                a(f"v_cmp_gt_i32 vcc, s{sOff}, v{t1}")
                a(f"v_cndmask_b32_e64 v{t1+pp}, v{t3}, v{vL16}, vcc")
                a(f"buffer_store_dwordx2 {v(vO + 4 + 2*pp, 2)}, v{t1+pp}, s[{sWS}:{sWS+3}], s{sOst} offen offset:{2048 + 8*pp} sc1")
        T(a)
    a.waitcnt(vm=0)
    a("s_barrier")
    a(f"s_cmp_lg_u32 s{sWv}, 0")
    a("s_cbranch_scc1 k2_attn_done")
    a(f"s_lshl_b32 s{sT}, s{sI}, 2")
    a(f"s_add_u32 s{sT}, s{sT}, s{sS}")
    a(f"s_lshl_b32 s{sT}, s{sT}, 7")
    a(f"s_add_u32 s{sT}, s{sT}, {hx(F_OFF)}")
    a(f"v_mov_b32 v{t0}, 1")
    a("s_mov_b64 exec, 1")
    a(f"buffer_atomic_add v{t0}, off, s[{sWS}:{sWS+3}], s{sT}")
    a("s_mov_b64 exec, -1")
    a.label("k2_attn_done")
    T.dump(a, sWS, sWv, 4, vT)
    a("s_endpgm")
    return V.hi


def gen_gemm(a, T, E):
    sW2, sWO, sB2, sWS, sWv, sS, sI, sJ, sT, sT2, sMb = (E[k] for k in ("sW2", "sWO", "sB2", "sWS", "sWv", "sS", "sI", "sJ", "sT", "sT2", "sMb"))
    vLane, vL16 = E["vLane"], E["vL16"]
    V = Regs("v", 3, 256)
    acc = V.alloc(64, 4)
    accs = V.alloc(8, 4)
    DA = 4
    vA = V.alloc(8 * DA, 4)
    RB = 6
    vB = V.alloc(4 * RB, 4)
    vSF = V.alloc(8, 4)
    vZ = V.alloc(4, 4)
    vb2 = V.alloc(36, 4)
    vT = V.alloc(4, 4)
    vRd = [V.alloc(), V.alloc()]
    vSRd = [V.alloc(), V.alloc()]
    vOffM = V.alloc()
    vOffS = V.alloc()
    vF = [V.alloc(), V.alloc(), V.alloc()]
    vPoll = V.alloc()
    vSSt = V.alloc()
    t0, t1, t2, t3 = vT, vT + 1, vT + 2, vT + 3
    sDM, sDS, sMm, sMs, sAo, sFl, sPo, sDMo, sDSo = 41, 42, 43, 44, 45, 46, 47, 48, 49

    srd(a, sW2, 8, 9, 4608 * 1152)
    srd(a, sWO, 4, 5, 576 * 1152)
    srd(a, sB2, 10, 11, 576 * 2)
    a(f"v_bfe_u32 v{t0}, v{vLane}, 2, 2")
    a(f"v_lshrrev_b32 v{t1}, 4, v{vLane}")
    a(f"v_and_b32 v{t2}, 3, v{vLane}")
    a(f"v_mul_u32_u24 v{vOffM}, 1152, v{t0}")
    a(f"v_lshl_add_u32 v{vOffM}, v{t1}, 6, v{vOffM}")
    a(f"v_lshl_add_u32 v{vOffM}, v{t2}, 4, v{vOffM}")
    a(f"v_lshrrev_b32 v{t3}, 1, v{vLane}")
    a(f"v_mul_u32_u24 v{vOffS}, 1152, v{t3}")
    a(f"v_and_b32 v{t3}, 1, v{vLane}")
    a(f"v_lshl_add_u32 v{vOffS}, v{t3}, 4, v{vOffS}")
    a(f"s_mul_i32 s{sT}, s{sWv}, {16*1152}")
    a(f"s_lshl_b32 s{sT2}, s{sJ}, 8")
    a(f"s_add_u32 s{sDMo}, s{sT}, s{sT2}")
    a(f"s_lshl_b32 s{sT2}, s{sJ}, 5")
    a(f"s_add_u32 s{sDSo}, s{sT}, s{sT2}")
    a(f"s_add_u32 s{sDSo}, s{sDSo}, 1024")
    a(f"s_mul_i32 s{sT}, s{sS}, {1152*1152}")
    a(f"s_add_u32 s{sDM}, s{sDMo}, s{sT}")
    a(f"s_add_u32 s{sDS}, s{sDSo}, s{sT}")
    a(f"s_mul_i32 s{sT}, s{sS}, {144*1152}")
    a(f"s_add_u32 s{sDMo}, s{sDMo}, s{sT}")
    a(f"s_add_u32 s{sDSo}, s{sDSo}, s{sT}")
    a(f"s_lshl_b32 s{sMm}, s{sWv}, 12")
    a(f"s_lshl_b32 s{sMs}, s{sWv}, 9")
    a(f"s_mul_i32 s{sAo}, s{sMb}, 288")
    a(f"s_mul_i32 s{sT}, s{sS}, 72")
    a(f"s_add_u32 s{sAo}, s{sAo}, s{sT}")
    a(f"s_lshl_b32 s{sAo}, s{sAo}, 10")

    NQ = 21

    def dma(q):
        out = []
        if q >= NQ:
            return out
        wo = q >= 18
        sr = sWO if wo else sW2
        bm, bs = (sDMo, sDSo) if wo else (sDM, sDS)
        row0 = (q - 18 if wo else q) * 64
        slot = (q % K2_NS) * K2_STAGE
        for rq in range(4):
            out += [f"s_add_u32 m0, s{sMm}, {slot + rq*1024}",
                    f"s_add_u32 s{sT}, s{bm}, {(row0 + 4*rq) * 1152}",
                    (f"buffer_load_dwordx4 v{vOffM}, s[{sr}:{sr+3}], s{sT} offen lds", f"D{q}")]
        out += [f"s_add_u32 m0, s{sMs}, {slot + 16384}",
                f"s_add_u32 s{sT}, s{bs}, {row0 * 1152}",
                "s_mov_b32 exec_hi, 0",
                (f"buffer_load_dwordx4 v{vOffS}, s[{sr}:{sr+3}], s{sT} offen lds", f"D{q}"),
                "s_mov_b32 exec_hi, -1"]
        return out

    NT = 41

    def aload(t):
        out = []
        if t >= NT:
            return out
        if t == 36:
            out += [f"s_mul_i32 s{sAo}, s{sMb}, 36",
                    f"s_mul_i32 s{sT2}, s{sS}, 9",
                    f"s_add_u32 s{sAo}, s{sAo}, s{sT2}",
                    f"s_lshl_b32 s{sAo}, s{sAo}, 10",
                    f"s_add_u32 s{sAo}, s{sAo}, {hx(O_OFF)}"]
        for kq in range(2):
            if t == 40 and kq == 1:
                continue
            out.append(f"buffer_load_dwordx4 {v(vA + 8*(t % DA) + 4*kq, 4)}, v{vL16}, s[{sWS}:{sWS+3}], s{sAo} offen offset:{((t % 2)*2 + kq)*1024}" + (" sc1" if t >= 36 else ""))
        if t % 2 == 1:
            out.append(f"s_add_u32 s{sAo}, s{sAo}, 4096")
        return out

    emit_list(a, aload(0) + dma(0) + aload(1) + aload(2) + dma(1) + aload(3) + dma(2))
    a(f"s_cmp_eq_u32 s{sS}, 0")
    a(f"s_cselect_b32 s{sT2}, 0, {hx(OOB)}")
    a(f"s_lshl_b32 s{sT}, s{sJ}, 8")
    a(f"s_add_u32 s{sT}, s{sT}, s{sT2}")
    a(f"v_lshrrev_b32 v{t3}, 5, v{vLane}")
    a(f"v_lshlrev_b32 v{vSSt}, 3, v{t3}")
    for cb in range(4):
        for g in range(4):
            a(f"buffer_load_dwordx2 {v(vb2 + 8*cb + 2*g, 2)}, v{vSSt}, s[{sB2}:{sB2+3}], s{sT} offen offset:{64*cb + 16*g}")
    a(f"s_lshl_b32 s{sT}, s{sJ}, 5")
    a(f"s_add_u32 s{sT}, s{sT}, s{sT2}")
    a(f"v_lshlrev_b32 v{vPoll}, 3, v{t1}")
    a(f"buffer_load_dwordx2 {v(vb2 + 32, 2)}, v{vPoll}, s[{sB2}:{sB2+3}], s{sT} offen offset:1024")
    a(f"s_lshl_b32 s{sT}, s{sMb}, 7")
    a(f"s_add_u32 s{sT}, s{sT}, {hx(G_OFF)}")
    a(f"v_and_b32 v{vZ}, 31, v{vLane}")
    a(f"v_lshlrev_b32 v{vZ}, 2, v{vZ}")
    a(f"buffer_load_dword v{vF[0]}, v{vZ}, s[{sWS}:{sWS+3}], s{sT} offen")
    a(f"v_and_b32 v{vZ+1}, 15, v{vLane}")
    a(f"v_lshlrev_b32 v{vZ+1}, 2, v{vZ+1}")
    a(f"buffer_load_dword v{vF[1]}, v{vZ+1}, s[{sWS}:{sWS+3}], s{sT} offen")
    a(f"buffer_load_dword v{vF[2]}, v{vZ+1}, s[{sWS}:{sWS+3}], s{sT} offen offset:64")
    a(f"v_lshlrev_b32 v{vRd[0]}, 6, v{t0}")
    a(f"v_lshl_add_u32 v{vRd[0]}, v{t2}, 3, v{vRd[0]}")
    a(f"v_lshl_add_u32 v{vRd[0]}, v{t3}, 10, v{vRd[0]}")
    a(f"v_and_b32 v{vZ+2}, 1, v{t1}")
    a(f"v_lshl_add_u32 v{vRd[0]}, v{vZ+2}, 5, v{vRd[0]}")
    a(f"v_add_u32 v{vRd[1]}, {2*K2_STAGE}, v{vRd[0]}")
    a(f"v_lshlrev_b32 v{vSRd[0]}, 9, v{vZ+2}")
    a(f"v_lshl_add_u32 v{vSRd[0]}, v{t3}, 7, v{vSRd[0]}")
    a(f"v_lshl_add_u32 v{vSRd[0]}, v{t0}, 5, v{vSRd[0]}")
    a(f"v_lshl_add_u32 v{vSRd[0]}, v{t2}, 3, v{vSRd[0]}")
    a(f"v_add_u32 v{vSRd[1]}, {2*K2_STAGE}, v{vSRd[0]}")
    a(f"v_lshlrev_b32 v{vSSt}, 2, v{vZ+1}")
    a(f"v_lshl_add_u32 v{vSSt}, v{vZ+2}, 9, v{vSSt}")
    a(f"v_lshl_add_u32 v{vSSt}, v{t3}, 3, v{vSSt}")
    a(f"s_lshl_b32 s{sFl}, s{sI}, 2")
    a(f"s_add_u32 s{sFl}, s{sFl}, s{sS}")
    a(f"s_lshl_b32 s{sFl}, s{sFl}, 7")
    a(f"s_add_u32 s{sFl}, s{sFl}, {hx(F_OFF)}")
    a(f"s_lshl_b32 s{sPo}, s{sS}, 6")
    a(f"s_add_u32 s{sPo}, s{sPo}, s{sMb}")
    a(f"s_mul_i32 s{sPo}, s{sPo}, 36")
    a(f"s_lshl_b32 s{sPo}, s{sPo}, 10")
    a(f"s_add_u32 s{sPo}, s{sPo}, {hx(P_OFF)}")
    for i in range(4):
        a(f"v_mov_b32 v{vZ+i}, 0")
    for k in range(32):
        a(f"v_lshlrev_b32 v{acc + 2*k}, 16, v{vb2 + k}")
        a(f"v_and_b32 v{acc + 2*k + 1}, 0xffff0000, v{vb2 + k}")
    for h2 in range(2):
        for k in range(2):
            a(f"v_lshlrev_b32 v{accs + 4*h2 + 2*k}, 16, v{vb2 + 32 + k}")
            a(f"v_and_b32 v{accs + 4*h2 + 2*k + 1}, 0xffff0000, v{vb2 + 32 + k}")
    for i in range(3):
        a(f"v_sub_f32 v{vF[i]}, 1.0, v{vF[i]}")
    T(a)
    a.wait_tag("D1")
    a("s_barrier")
    T(a)

    frs = []
    for t in range(NT):
        for kq in range(2):
            if t == 40 and kq == 1:
                continue
            for cb in range(4):
                frs.append((t, kq, cb))

    def bread(f):
        if f >= len(frs):
            return []
        t, kq, cb = frs[f]
        q = t // 2
        sl = q % K2_NS
        o = (sl % 2) * K2_STAGE + ((t % 2) * 2 + kq) * 4096 + cb * 256
        return [f"ds_read_b64_tr_b16 {v(vB + 4*(f % RB) + 2*z, 2)}, v{vRd[sl // 2]} offset:{o + 2048*z}" for z in range(2)]

    def sread(t):
        if t >= NT:
            return []
        q = t // 2
        sl = q % K2_NS
        o = (sl % 2) * K2_STAGE + 16384 + (t % 2) * 1024
        return [f"ds_read_b64_tr_b16 {v(vSF + 4*(t % 2) + 2*z, 2)}, v{vSRd[sl // 2]} offset:{o + 256*z}" for z in range(2)]

    for f in range(RB - 1):
        emit_list(a, bread(f))
    emit_list(a, sread(0))
    pend = []
    f = 0
    for t in range(NT):
        q = t // 2
        ex = []
        if t % 2 == 0:
            ex = dma(q + 3)
        if t == 22:
            a(f"buffer_load_dword v{vPoll}, off, s[{sWS}:{sWS+3}], s{sFl} sc1")
        if t == 36:
            T(a)
            for e in pend:
                emit_list(a, e)
            pend = []
            for i in range(64):
                a(f"v_mul_f32 v{acc+i}, v{acc+i}, v{vF[0]}")
            for h2 in range(2):
                for i in range(4):
                    a(f"v_mul_f32 v{accs+4*h2+i}, v{accs+4*h2+i}, v{vF[1+h2]}")
        slot = vA + 8 * (t % DA)
        n8 = 4 if t == 40 else 8
        for i in range(n8):
            _, kq, cb = frs[f]
            emit_list(a, bread(f + RB - 1))
            a(f"{MF32} {v(acc + 16*cb, 16)}, {v(vB + 4*(f % RB), 4)}, {v(slot + 4*kq, 4)}, {v(acc + 16*cb, 16)}")
            f += 1
            if i == 1 and pend:
                emit_list(a, pend.pop(0))
            if i == 2 and pend:
                emit_list(a, pend.pop(0))
            if i == 3:
                emit_list(a, sread(t + 1))
            if i >= 3 and ex:
                k = 3 if len(ex) > 5 else 5
                emit_list(a, ex[:k])
                ex = ex[k:]
        emit_list(a, ex)
        f1 = vZ if t == 40 else slot + 4
        for i in range(4):
            a(f"v_permlane16_swap_b32 v{slot+i}, v{f1+i}")
        nl = aload(t + DA)
        if t + DA == 36:
            def poll(a):
                a(f"v_readfirstlane_b32 s{sT2}, v{vPoll}")
                a(f"s_cmp_ge_u32 s{sT2}, 4")
                a("s_cbranch_scc1 k2_ready")
                a.raw("    s_mov_b32 s53, 0x20000")
                a.label("k2_spin")
                a.raw("    s_sub_u32 s53, s53, 1")
                a.raw("    s_cbranch_scc1 k2_ready")
                a.raw("    s_sleep 2")
                a.raw(f"    buffer_load_dword v{vPoll}, off, s[{sWS}:{sWS+3}], s{sFl} sc1")
                a.raw("    s_waitcnt vmcnt(0)")
                a.raw(f"    v_readfirstlane_b32 s{sT2}, v{vPoll}")
                a.raw("    s_nop 3")
                a.raw(f"    s_cmp_lt_u32 s{sT2}, 4")
                a.raw("    s_cbranch_scc1 k2_spin")
                a.label("k2_ready")
            nl = [poll] + nl
        pend = [[f"{MF16} {v(accs, 4)}, {v(vSF + 4*(t % 2), 4)}, {v(slot, 4)}, {v(accs, 4)}"],
                [f"{MF16} {v(accs + 4, 4)}, {v(vSF + 4*(t % 2), 4)}, {v(f1, 4)}, {v(accs + 4, 4)}"] + nl]
        if t % 2 == 1 and t < NT - 1:
            a.wait_tag(f"D{q+2}")
            a("s_barrier")
            if q in (5, 11):
                T(a)
    for e in pend:
        emit_list(a, e)
    T(a)
    a(f"s_lshl_b32 s{sT}, s{sJ}, 13")
    a(f"s_add_u32 s{sT}, s{sT}, s{sPo}")
    for cb in range(4):
        for u in range(2):
            b = acc + 16 * cb + 8 * u
            for k in range(4):
                a(f"v_cvt_pk_bf16_f32 v{b+k}, v{b+2*k}, v{b+2*k+1}")
            if cb == 2 and u == 0:
                a(f"s_add_u32 s{sT}, s{sT}, 4096")
            a(f"buffer_store_dwordx4 {v(b, 4)}, v{vL16}, s[{sWS}:{sWS+3}], s{sT} offen offset:{((cb % 2)*2 + u)*1024}")
    a(f"s_lshl_b32 s{sT}, s{sJ}, 10")
    a(f"s_add_u32 s{sT}, s{sT}, s{sPo}")
    a(f"s_add_u32 s{sT}, s{sT}, {32*1024}")
    for h2 in range(2):
        b = accs + 4 * h2
        for k in range(2):
            a(f"v_cvt_pk_bf16_f32 v{b+k}, v{b+2*k}, v{b+2*k+1}")
        a(f"buffer_store_dwordx2 {v(b, 2)}, v{vSSt}, s[{sWS}:{sWS+3}], s{sT} offen offset:{256*h2}")
    T.dump(a, sWS, sWv, 4, vT)
    a("s_endpgm")
    return V.hi


def gen_k3(a):
    L = "k3_kernel"
    a.raw(".p2align 8")
    a.raw(f".globl {L}")
    a.raw(f".type {L},@function")
    a.label(L)
    NWG = 576
    sO, sWS = 16, 20
    a(f"s_cmp_ge_u32 s2, {NWG}")
    a("s_cbranch_scc1 k3_end")
    T = Stamps(2)
    T.start(a)
    a("s_load_dwordx2 s[4:5], s[0:1], 72")
    a("s_load_dwordx2 s[6:7], s[0:1], 88")
    a("v_lshrrev_b32 v3, 6, v0")
    a("v_and_b32 v1, 63, v0")
    a("v_readfirstlane_b32 s24, v3")
    a("v_lshlrev_b32 v2, 4, v1")
    a("s_lshl_b32 s25, s2, 2")
    a("s_add_u32 s25, s25, s24")
    a(f"s_mul_hi_u32 s26, s25, {hx((1 << 32) // 36 + 1)}")
    a("s_mul_i32 s27, s26, 36")
    a("s_sub_u32 s27, s25, s27")
    a("s_lshl_b32 s28, s25, 10")
    a(f"s_add_u32 s28, s28, {hx(P_OFF)}")
    a("v_and_b32 v4, 31, v1")
    a("v_mul_u32_u24 v4, 1152, v4")
    a("v_lshrrev_b32 v5, 5, v1")
    a("v_lshl_add_u32 v4, v5, 4, v4")
    a(f"s_mul_i32 s29, s26, {32*1152}")
    a("s_lshl_b32 s30, s27, 5")
    a("s_add_u32 s29, s29, s30")
    a.waitcnt(lg=0)
    srd(a, sWS, 6, 7, gen.WS_SIZE)
    srd(a, sO, 4, 5, 2048 * 1152)
    for sp in range(4):
        a(f"buffer_load_dwordx4 {v(8 + 4*sp, 4)}, v2, s[{sWS}:{sWS+3}], s28 offen")
        if sp < 3:
            a(f"s_add_u32 s28, s28, {64*36*1024}")
    for sp in range(4):
        for k in range(4):
            src = 8 + 4 * sp + k
            lo, hi = 24 + 2 * k, 25 + 2 * k
            if sp == 0:
                a(f"v_lshlrev_b32 v{lo}, 16, v{src}")
                a(f"v_and_b32 v{hi}, 0xffff0000, v{src}")
            else:
                a(f"v_lshlrev_b32 v6, 16, v{src}")
                a(f"v_and_b32 v7, 0xffff0000, v{src}")
                a(f"v_add_f32 v{lo}, v{lo}, v6")
                a(f"v_add_f32 v{hi}, v{hi}, v7")
    for k in range(4):
        a(f"v_cvt_pk_bf16_f32 v{8+k}, v{24+2*k}, v{25+2*k}")
    a("v_permlane32_swap_b32 v8, v10")
    a("v_permlane32_swap_b32 v9, v11")
    a(f"buffer_store_dwordx4 v[8:11], v4, s[{sO}:{sO+3}], s29 offen")
    T.dump(a, sWS, 24, 4, 12)
    a.label("k3_end")
    a("s_endpgm")
    return 32, f"; @launch kernel=k3_kernel grid=({NWG},1,1) block=(256,1,1) lds=0"
```

```python
import sys, struct, math
sys.path.insert(0, "dev")
from asmlib import *

NAME = "gated_mix__sliding_block__mixer_channel_mlp__prompt"

H_OFF = 0
QKV_OFF = 0x1200000
O_OFF = 0x18C0000
P_OFF = 0x1B00000
G_OFF = 0x2400000
F_OFF = 0x2410000
WS_SIZE = 0x2420000
OOB = 0x40000000


def f2u(x):
    return struct.unpack("<I", struct.pack("<f", x))[0]


def hx(x):
    return f"0x{x & 0xffffffff:x}"


LOG2E = 1.4426950408889634
GC1 = -2.0 * math.sqrt(2.0 / math.pi) * LOG2E
GC2 = GC1 * 0.044715
QSCALE = LOG2E / math.sqrt(18.0)

import os
STAMP = bool(os.environ.get("STAMP"))
T_OFF = 0x2500000
if STAMP:
    WS_SIZE = 0x2800000


class Stamps:
    def __init__(self, kidx, base=60, n=18):
        self.n = 0
        self.kidx = kidx
        self.base = base
        self.max = n

    def start(self, a):
        if not STAMP:
            return
        a("s_memrealtime s[56:57]")
        self.n = 0
        self(a)

    def __call__(self, a):
        if not STAMP:
            return
        assert self.n < self.max
        a(f"s_memtime s[{self.base+2*self.n}:{self.base+1+2*self.n}]")
        self.n += 1

    def dump(self, a, sWS, sWv, nw, vt):
        if not STAMP:
            return
        self(a)
        a("s_memrealtime s[58:59]")
        a.waitcnt(lg=0)
        a(f"s_mul_i32 s54, s2, {nw}")
        a(f"s_add_u32 s54, s54, s{sWv}")
        a(f"s_lshl_b32 s54, s54, 7")
        a(f"s_add_u32 s54, s54, {hx(T_OFF + self.kidx * 0x80000)}")
        a(f"v_mov_b32 v{vt}, 0")
        vals = ["s56", "s58", str(self.n)] + [f"s{self.base+2*i}" for i in range(self.n)]
        for i, x in enumerate(vals):
            a(f"v_mov_b32 v{vt+1}, {x}")
            a(f"buffer_store_dword v{vt+1}, v{vt}, s[{sWS}:{sWS+3}], s54 offen offset:{4*i}")


MF32 = "v_mfma_f32_32x32x16_bf16"
MF16 = "v_mfma_f32_16x16x32_bf16"


def srd(a, d, lo, hi, size):
    a(f"s_mov_b32 s{d}, s{lo}")
    a(f"s_and_b32 s{d+1}, s{hi}, 0xffff")
    a(f"s_mov_b32 s{d+2}, {hx(size)}")
    a(f"s_mov_b32 s{d+3}, 0x20000")


def kernel_desc(label, nv, ns=100):
    nv = (nv + 7) // 8 * 8
    return f""".section .rodata,"a"
.p2align 6
.amdhsa_kernel {label}
  .amdhsa_next_free_vgpr {nv}
  .amdhsa_next_free_sgpr {ns}
  .amdhsa_accum_offset {min(256, (nv + 3) // 4 * 4)}
  .amdhsa_group_segment_fixed_size 0
  .amdhsa_kernarg_size 96
  .amdhsa_user_sgpr_count 2
  .amdhsa_user_sgpr_kernarg_segment_ptr 1
  .amdhsa_system_sgpr_workgroup_id_x 1
.end_amdhsa_kernel
"""


def code_prefetch(a, vtmp, vdst, spc, slim, endlabel, sidx, here, begin, lines=16):
    if os.environ.get("NOCPF"):
        return
    a(f"s_getpc_b64 s[{spc}:{spc+1}]")
    a.label(here)
    a(f"s_sub_u32 s{spc}, s{spc}, {here}-{begin}")
    a(f"s_subb_u32 s{spc+1}, s{spc+1}, 0")
    a(f"s_mul_i32 s{slim}, s{sidx}, {lines*128}")
    a(f"v_lshlrev_b32 v{vtmp}, 7, v0")
    a(f"v_add_u32 v{vtmp}, s{slim}, v{vtmp}")
    a(f"s_mov_b32 s{slim}, {endlabel}-{begin}-4")
    a(f"v_min_u32 v{vdst}, s{slim}, v{vtmp}")
    a(f"v_cmp_gt_u32 vcc, {lines}, v0")
    a(f"s_and_saveexec_b64 s[{slim+0 if False else spc+2}:{spc+3}], vcc")
    a(f"s_cbranch_execz {here}_skip")
    a.raw(f"    global_load_dword v{vdst}, v{vdst}, s[{spc}:{spc+1}]")
    a.label(here + "_skip")
    a(f"s_mov_b64 exec, s[{spc+2}:{spc+3}]")


K1_STAGE = 73728
K1_AR = K1_STAGE + 8192
K1_CS = 159744
K1_LDS = K1_CS + 4096
SCHEME = os.environ.get("SCHEME", "pp")


def gen_k1(a):
    L = "k1_kernel"
    a.raw(".p2align 8")
    a.raw(f".globl {L}")
    a.raw(f".type {L},@function")
    a.label(L)
    V = Regs("v", 1, 256)
    vA = V.alloc(144, 4)
    acc = [V.alloc(16, 4), V.alloc(16, 4)]
    RB = int(os.environ.get("RB", "6"))
    vB = V.alloc(4 * RB, 4)
    vCsF = [V.alloc(4, 4), V.alloc(4, 4)]
    vCsAcc = V.alloc(4, 4)
    vSel = V.alloc(4, 4)
    vCs = [V.alloc(4, 4), V.alloc(4, 4)]
    vB1 = [V.alloc(4, 4), V.alloc(4, 4)]
    vT = V.alloc(4, 4)
    vRd = [[V.alloc(), V.alloc()], [V.alloc(), V.alloc()]]
    vOffB = V.alloc()
    vCsRd = V.alloc()
    vE = V.alloc()
    vSt = V.alloc()
    vCsA = V.alloc()
    vRstd = V.alloc()
    vNrm = V.alloc()
    vC2 = V.alloc()
    vLane = V.alloc()
    vDum = V.alloc()
    vS = [vCs[1], vCs[1] + 1]
    vSS = [vCs[1] + 2, vCs[1] + 3]
    vARd = vB1[0]
    vOffA = [vB1[1], vB1[1] + 1]
    sX, sW, sB, sWS = 16, 20, 24, 28
    sWv, sA0, sAM, sDW, sM, sSt, sT, sT2, sOnes, sScale, sFb, sQc = 32, 33, 34, 35, 36, 37, 38, 39, 40, 41, 42, 43
    sXcd, sIdx, sS, sMt, sCl, sMb, sOwn = 44, 45, 46, 47, 48, 49, 53

    a("s_cmp_ge_u32 s2, 256")
    a("s_cbranch_scc1 k1_end")
    T = Stamps(0)
    T.start(a)
    a("s_load_dwordx4 s[4:7], s[0:1], 0")
    a("s_load_dwordx4 s[8:11], s[0:1], 32")
    a("s_load_dwordx2 s[12:13], s[0:1], 64")
    a("s_load_dwordx2 s[14:15], s[0:1], 88")
    t0, t1, t2, t3 = vT, vT + 1, vT + 2, vT + 3
    a(f"v_lshrrev_b32 v{vT}, 6, v0")
    a(f"v_and_b32 v{vLane}, 63, v0")
    a(f"v_readfirstlane_b32 s{sWv}, v{vT}")
    a(f"s_and_b32 s{sXcd}, s2, 7")
    a(f"s_lshr_b32 s{sIdx}, s2, 3")
    a(f"s_and_b32 s{sS}, s{sXcd}, 3")
    a(f"s_lshr_b32 s{sT}, s{sXcd}, 2")
    a(f"s_lshl_b32 s{sT}, s{sT}, 2")
    a(f"s_and_b32 s{sMt}, s{sIdx}, 3")
    a(f"s_add_u32 s{sMt}, s{sMt}, s{sT}")
    a(f"s_lshr_b32 s{sCl}, s{sIdx}, 2")
    a(f"v_lshrrev_b32 v{t0}, 3, v{vLane}")
    a(f"v_and_b32 v{t1}, 7, v{vLane}")
    a(f"v_lshrrev_b32 v{t2}, 1, v{t0}")
    a(f"v_xor_b32 v{t1}, v{t1}, v{t2}")
    a(f"v_mul_u32_u24 v{t0}, 1152, v{t0}")
    a(f"v_lshl_add_u32 v{vOffA[0]}, v{t1}, 4, v{t0}")
    a(f"v_xor_b32 v{vOffA[1]}, 64, v{vOffA[0]}")
    a(f"s_lshl_b32 s{sMb}, s{sMt}, 3")
    a(f"s_add_u32 s{sMb}, s{sMb}, s{sWv}")
    a(f"s_mul_i32 s{sA0}, s{sMb}, {32*1152}")
    a(f"s_lshl_b32 s{sAM}, s{sWv}, 13")
    a(f"s_add_u32 s{sAM}, s{sAM}, {K1_AR}")
    a(f"s_lshl_b32 s{sM}, s{sWv}, 10")
    a(f"s_mov_b32 s{sOnes}, 0x3f803f80")
    a.waitcnt(lg=0)
    srd(a, sX, 4, 5, 2048 * 1152)

    def a_dma(n):
        out = []
        for o in range(4):
            out += [f"s_add_u32 m0, s{sAM}, {(n % 2) * 4096 + o * 1024}",
                    f"s_add_u32 s{sT2}, s{sA0}, {o * 8 * 1152 + n * 128}",
                    (f"buffer_load_dwordx4 v{vOffA[o % 2]}, s[{sX}:{sX+3}], s{sT2} offen lds", f"A{n}")]
        return out

    PF = os.environ.get("PF") is not None
    if PF:
        a(f"s_lshr_b32 s{sT}, s{sXcd}, 2")
        a(f"s_mul_i32 s{sT}, s{sT}, {1024*1152}")
        a(f"s_mul_i32 s{sT2}, s{sIdx}, {288*128}")
        a(f"s_add_u32 s{sT}, s{sT}, s{sT2}")
        a(f"v_subrev_u32 v{t0}, 192, v0")
        a(f"v_cmp_gt_u32 s[50:51], 288, v{t0}") if False else None
        a(f"s_movk_i32 s52, 288")
        a(f"v_cmp_gt_u32 s[50:51], s52, v{t0}")
        a(f"v_lshlrev_b32 v{t0}, 7, v{t0}")
        a(f"v_mov_b32 v{t1}, {hx(OOB)}")
        a(f"v_cndmask_b32 v{t0}, v{t1}, v{t0}, s[50:51]")
        a(f"buffer_load_dword v{vSel}, v{t0}, s[{sX}:{sX+3}], s{sT} offen")
    emit_list(a, a_dma(0) + a_dma(1))

    def w_prefetch(pitch, colbase_s, nlines):
        if not PF:
            return
        a(f"s_and_b32 s{sT}, s{sMt}, 3")
        a(f"s_mul_i32 s{sT}, s{sT}, {144*pitch}")
        a(f"s_add_u32 s{sT}, s{sT}, s{colbase_s}")
        a(f"s_movk_i32 s52, 144")
        a(f"v_cmp_gt_u32 s[50:51], s52, v0")
        a(f"v_mul_u32_u24 v{t2}, {pitch}, v0")
        a(f"v_mov_b32 v{t1}, {hx(OOB)}")
        a(f"v_cndmask_b32 v{t2}, v{t1}, v{t2}, s[50:51]")
        for i in range(nlines):
            a(f"buffer_load_dword v{vSel+1+(i%3)}, v{t2}, s[{sW}:{sW+3}], s{sT} offen offset:{128*i}")
    a(f"v_lshrrev_b32 v{vE}, 5, v{vLane}")
    a(f"v_bfe_u32 v{t0}, v{vLane}, 2, 2")
    a(f"v_and_b32 v{t3}, 3, v{vLane}")
    a(f"v_bfe_u32 v{t2}, v{vLane}, 4, 1")
    a(f"v_lshlrev_b32 v{vCsRd}, 6, v{t0}")
    a(f"v_lshl_add_u32 v{vCsRd}, v{t3}, 3, v{vCsRd}")
    a(f"v_lshl_add_u32 v{vRd[0][0]}, v{t2}, 5, v{vCsRd}")
    a(f"v_lshl_add_u32 v{vRd[0][0]}, v{vE}, 11, v{vRd[0][0]}")
    a(f"v_lshl_add_u32 v{t0}, v{vE}, 2, v{t0}")
    a(f"v_lshlrev_b32 v{vOffB}, 6, v{t2}")
    a(f"v_lshl_add_u32 v{vOffB}, v{t3}, 4, v{vOffB}")
    a(f"s_cmp_ge_u32 s{sCl}, 6")
    a("s_cbranch_scc1 k1_qkv")
    st_branch = a.save()

    def common_late():
        code_prefetch(a, t0, vDum, 8, 12, "all_code_end", sIdx, "k1_here%d" % len(a.out), begin="k1_kernel", lines=20)
        srd(a, sWS, 14, 15, WS_SIZE)
        a(f"v_and_b32 v{t0}, 31, v{vLane}")
        a(f"v_bfe_u32 v{t1}, v{t0}, 1, 3")
        a(f"v_lshlrev_b32 v{t2}, 1, v{vE}")
        a(f"v_xor_b32 v{t1}, v{t1}, v{t2}")
        a(f"v_lshlrev_b32 v{t1}, 4, v{t1}")
        a(f"v_lshl_add_u32 v{t1}, v{t0}, 7, v{t1}")
        a(f"v_add_u32 v{vARd}, s{sAM}, v{t1}")
        a(f"v_xor_b32 v{vARd+1}, 16, v{vARd}")
        a(f"v_xor_b32 v{vARd+2}, 64, v{vARd}")
        a(f"v_xor_b32 v{vARd+3}, 80, v{vARd}")
        a(f"v_add_u32 v{vRd[0][1]}, 36864, v{vRd[0][0]}")
        a(f"v_add_u32 v{vRd[1][0]}, {K1_STAGE}, v{vRd[0][0]}")
        a(f"v_add_u32 v{vRd[1][1]}, {K1_STAGE + 36864}, v{vRd[0][0]}")
        a(f"v_lshlrev_b32 v{vSt}, 4, v{vLane}")

    def a_reads(n):
        return [f"ds_read_b128 {v(vA + 16*n + 4*i, 4)}, v{vARd + i} offset:{(n % 2) * 4096}" for i in range(4)]

    def dma(p, n, pitch):
        return [f"s_add_u32 m0, s{sM}, {(p % 2) * K1_STAGE + n * 8192}",
                f"s_add_u32 s{sT}, s{sDW}, {p * 128 + n * 64 * pitch}",
                (f"buffer_load_dwordx4 v{vOffB}, s[{sW}:{sW+3}], s{sT} offen lds", f"D{p}")]

    def dma_own1(pitch, half):
        out = []
        for i in range(4 * half, 4 * half + 4):
            out += [f"s_add_u32 m0, s{sAM}, {i * 1024}",
                    f"s_add_u32 s{sT}, s{sOwn}, {i * 8 * pitch}",
                    (f"buffer_load_dwordx4 v{vOffB}, s[{sW}:{sW+3}], s{sT} offen lds", "D1")]
        return out

    def own_setup(pitch):
        a(f"s_mul_i32 s{sOwn}, s{sWv}, {56 * pitch}")
        a(f"s_add_u32 s{sOwn}, s{sOwn}, s{sDW}")
        a(f"s_add_u32 s{sOwn}, s{sOwn}, {64 * pitch + 128}")

    def dma_stage(p, pitch):
        return sum((dma(p, n, pitch) for n in range(9)), [])

    def b_reads(j, m, slot, base=None):
        if base is None:
            base = vB
        p, blk = j // 2, j % 2
        t, vv = m // 2, m % 2
        o = (4 * t + vv) * 1024 + blk * 256
        hi = 1 if o >= 36864 else 0
        o -= hi * 36864
        return [f"ds_read_b64_tr_b16 {v(base + 4*slot + 2*z, 2)}, v{vRd[p % 2][hi]} offset:{o + 512*z}" for z in range(2)]

    def mfma(j, m, slot, ac, base=None):
        if base is None:
            base = vB
        return f"{MF32} {v(ac, 16)}, {v(base + 4*slot, 4)}, {v(vA + 4*m, 4)}, {'0' if m == 0 else v(ac, 16)}"

    def first_reads(j):
        return sum((b_reads(j, f, f % RB) for f in range(RB - 1)), [])

    def block_main(j, ac, nxt=None):
        out = []
        for m in range(36):
            f = m + RB - 1
            if f < 36:
                out += b_reads(j, f, f % RB)
            elif nxt is not None:
                out += b_reads(nxt, f - 36, f % RB)
            out.append(mfma(j, m, m % RB, ac))
        return out

    def spread(fill, extra, group=3):
        ng = (len(extra) + group - 1) // group
        if ng == 0:
            return fill
        step = max(1, len(fill) // (ng + 1))
        out, k = [], 0
        for i, e in enumerate(fill):
            out.append(e)
            if (i + 1) % step == 0 and k < ng:
                out += extra[group * k:group * k + group]
                k += 1
        out += extra[group * k:]
        return out

    pitch = 9216
    srd(a, sW, 8, 9, 576 * 9216)
    srd(a, sB, 10, 11, 4608 * 2)
    a(f"s_mul_i32 s{sQc}, s{sS}, 6")
    a(f"s_add_u32 s{sQc}, s{sQc}, s{sCl}")
    a(f"s_mul_i32 s{sDW}, s{sWv}, {8 * pitch}")
    a(f"s_mul_i32 s{sFb}, s{sQc}, 384")
    a(f"s_add_u32 s{sDW}, s{sDW}, s{sFb}")
    a(f"v_mul_u32_u24 v{t0}, {pitch}, v{t0}")
    a(f"v_add_u32 v{vOffB}, v{vOffB}, v{t0}")
    w_prefetch(pitch, sFb, 3)
    emit_list(a, dma_stage(0, pitch))
    a(f"v_lshlrev_b32 v{t2}, 1, v0")
    a(f"buffer_load_ushort v{vCsAcc+2}, v{t2}, s[{sB}:{sB+3}], s{sFb} offen")
    common_late()
    a(f"s_mul_i32 s{sSt}, s{sMb}, 288")
    a(f"s_mul_i32 s{sT}, s{sQc}, 12")
    a(f"s_add_u32 s{sSt}, s{sSt}, s{sT}")
    a(f"s_lshl_b32 s{sSt}, s{sSt}, 10")
    a(f"s_and_b32 s{sT2}, s{sWv}, 3")
    a(f"s_lshr_b32 s{sT}, s{sT2}, 1")
    a(f"s_lshl_b32 s{sT}, s{sT}, 8")
    a(f"s_and_b32 s{sFb}, s{sWv}, 1")
    a(f"s_lshl_b32 s{sFb}, s{sFb}, 5")
    a(f"s_add_u32 s{sT}, s{sT}, s{sFb}")
    a(f"v_lshrrev_b32 v{t0}, 4, v{vLane}")
    a(f"v_lshl_add_u32 v{vCsRd}, v{t0}, 10, v{vCsRd}")
    a(f"v_add_u32 v{vCsRd}, s{sT}, v{vCsRd}")
    a(f"s_lshl_b32 s{sT2}, s{sT2}, 6")
    a(f"s_add_u32 s{sT2}, s{sT2}, {K1_CS}")
    a(f"v_and_b32 v{vCsA}, 15, v{vLane}")
    a(f"v_lshl_add_u32 v{vCsA}, v{vCsA}, 2, s{sT2}")
    a(f"v_lshlrev_b32 v{vE}, 4, v{vE}")
    a(f"v_add_u32 v{vE}, {K1_CS}, v{vE}")
    for i in range(4):
        a(f"v_mov_b32 v{vSel+i}, s{sOnes}")
    a(f"v_mov_b32 v{vC2}, {hx(f2u(GC2))}")
    for r in vS + vSS:
        a(f"v_mov_b32 v{r}, 0")

    own_setup(pitch)

    def stats(n):
        o, k = [], 0
        for r in range(vA + 16 * n, vA + 16 * n + 16):
            o.append(f"v_dot2_f32_bf16 v{vS[k]}, v{r}, s{sOnes}, v{vS[k]}")
            o.append(f"v_dot2_f32_bf16 v{vSS[k]}, v{r}, v{r}, v{vSS[k]}")
            k ^= 1
        return o

    def a_step(n):
        a.wait_tag(f"A{n}")
        emit_list(a, a_reads(n))

    def a_refill(n, nlater=0):
        a.waitcnt(lg=nlater)
        if n + 2 < 9:
            emit_list(a, a_dma(n + 2))
            if n == 5:
                emit_list(a, dma(1, 0, pitch))
        else:
            emit_list(a, dma_own1(pitch, n % 2))

    def cs_rd(m):
        return [f"ds_read_b64_tr_b16 {v(vCsF[m % 2] + 2*z, 2)}, v{vCsRd} offset:{m*4096 + z*512}" for z in range(2)]

    def cs_mf(m):
        return f"{MF16} {v(vCsAcc, 4)}, {v(vSel, 4)}, {v(vCsF[m % 2], 4)}, {'0' if m == 0 else v(vCsAcc, 4)}"

    def colsum():
        out = cs_rd(0) + ["s_nop 0"] + cs_rd(1) + ["s_nop 0"]
        for m in range(18):
            out.append(cs_mf(m))
            if m + 2 < 18:
                r = cs_rd(m + 2)
                if m + 2 >= 9:
                    r = [x.replace(f"offset:{(m+2)*4096 + z*512}", f"offset:{(m+2-9)*4096 + z*512}") for z, x in enumerate(r)]
                if m + 2 == 9:
                    r = [f"v_add_u32 v{vCsRd}, 36864, v{vCsRd}"] + r
                    out += r[:2]
                    out += [r[2], "s_nop 0", "s_nop 0"]
                    continue
                out += r
            else:
                out += ["s_nop 0", "s_nop 0"]
        return out

    def colsum_fin(p):
        d = (K1_STAGE if p % 2 == 0 else -K1_STAGE) - 36864
        return [f"ds_write_b32 v{vCsA}, v{vCsAcc} offset:{p*256}",
                f"v_add_u32 v{vCsRd}, {hx(d)}, v{vCsRd}"]

    T(a)
    for n in range(2):
        a_step(n)
        a_refill(n)
        emit_list(a, stats(n))
    a(f"v_lshlrev_b32 v{t2}, 2, v0")
    a(f"v_add_u32 v{t2}, {K1_CS}, v{t2}")
    a(f"v_lshlrev_b32 v{t3}, 16, v{vCsAcc+2}")
    a(f"ds_write_b32 v{t2}, v{t3} offset:2048")
    a.wait_tag("D0")
    a("s_barrier")
    T(a)
    bm = block_main(0, acc[0], 1)
    emit_list(a, first_reads(0))
    per = []
    cur = []
    for e in bm:
        cur.append(e)
        if e.startswith("v_mfma"):
            per.append(cur)
            cur = []
    done = 0
    cs0 = colsum()
    cs0 = [[x for x in cs0[i:i+3] if x != "s_nop 0"] for i in range(0, len(cs0), 3)]
    for n in range(2, 9):
        a_step(n)
        upto = 4 * n if n > 2 else 8
        for m in range(done, upto):
            emit_list(a, per[m])
            if m == done + 1:
                a_refill(n, nlater=4)
            elif cs0 and m > done + 1:
                emit_list(a, cs0.pop(0))
        done = upto
        st = stats(n)
        emit_list(a, st[:16])
        if cs0:
            emit_list(a, cs0.pop(0))
        emit_list(a, st[16:])
        if n in (4,):
            T(a)
    for m in range(done, 36):
        emit_list(a, per[m])
        if cs0:
            emit_list(a, cs0.pop(0))
    assert not cs0
    T(a)

    def stats_fin():
        o = []
        for (x, y) in ((vS, t0), (vSS, t2)):
            o.append(f"v_add_f32 v{y}, v{x[0]}, v{x[1]}")
            o.append(f"v_mov_b32 v{y+1}, v{y}")
        o.append(f"v_permlane32_swap_b32 v{t0}, v{t1}")
        o.append(f"v_permlane32_swap_b32 v{t2}, v{t3}")
        o.append(f"v_add_f32 v{t0}, v{t0}, v{t1}")
        o.append(f"v_add_f32 v{t2}, v{t2}, v{t3}")
        o.append(f"v_mul_f32 v{t0}, {hx(f2u(1.0/576))}, v{t0}")
        o.append(f"v_mul_f32 v{t2}, {hx(f2u(1.0/576))}, v{t2}")
        o.append(f"v_fma_f32 v{t2}, -v{t0}, v{t0}, v{t2}")
        o.append(f"v_max_f32 v{t2}, 0, v{t2}")
        o.append(f"v_add_f32 v{t2}, {hx(f2u(1e-5))}, v{t2}")
        o.append(f"v_rsq_f32 v{vRstd}, v{t2}")
        o.append(f"v_mul_f32 v{vNrm}, -v{t0}, v{vRstd}")
        return o

    def epi_mlp(j, ac):
        o = []

        def rd(g):
            return [f"ds_read_b128 {v(vCs[g % 2], 4)}, v{vE} offset:{128*j + 32*g}",
                    f"ds_read_b128 {v(vB1[g % 2], 4)}, v{vE} offset:{2048 + 128*j + 32*g}"]
        o += rd(0) + rd(1)
        for g in range(4):
            c, b, x = vCs[g % 2], vB1[g % 2], ac + 4 * g
            o += [f"v_fma_f32 v{c+e}, v{vNrm}, v{c+e}, v{b+e}" for e in range(4)]
            o += [f"v_fma_f32 v{x+e}, v{x+e}, v{vRstd}, v{c+e}" for e in range(4)]
            if g + 2 < 4:
                o += rd(g + 2)
            o += [f"v_mul_f32 v{vT+e}, v{x+e}, v{x+e}" for e in range(4)]
            o += [f"v_fmaak_f32 v{vT+e}, v{vT+e}, v{vC2}, {hx(f2u(GC1))}" for e in range(4)]
            o += [f"v_mul_f32 v{vT+e}, v{vT+e}, v{x+e}" for e in range(4)]
            o += [f"v_exp_f32 v{vT+e}, v{vT+e}" for e in range(4)]
            o += [f"v_add_f32 v{vT+e}, 1.0, v{vT+e}" for e in range(4)]
            o += [f"v_rcp_f32 v{vT+e}, v{vT+e}" for e in range(4)]
            o += [f"v_mul_f32 v{x+e}, v{x+e}, v{vT+e}" for e in range(4)]
            d = ac + 8 * (g // 2) + 2 * (g % 2)
            o += [f"v_cvt_pk_bf16_f32 v{d+e}, v{x+2*e}, v{x+2*e+1}" for e in range(2)]
            if g % 2 == 1:
                o.append((f"buffer_store_dwordx4 {v(ac + 8*(g//2), 4)}, v{vSt}, s[{sWS}:{sWS+3}], s{sSt} offen offset:{(g//2)*1024}", "ST"))
        o.append(f"s_add_u32 s{sSt}, s{sSt}, 2048")
        return o

    def after_arrival(role):
        emit_list(a, stats_fin())
        emit_list(a, colsum_fin(0))
        a.waitcnt(lg=0)
        a("s_barrier")

    CSROLE = int(os.environ.get("CSROLE", "0"))

    def weave(main, csl):
        groups = [[x for x in csl[i:i+3] if x != "s_nop 0"] for i in range(0, len(csl), 3)]
        out, nm = [], 0
        for e in main:
            out.append(e)
            t = e[0] if isinstance(e, tuple) else e
            if t.startswith(MF32):
                nm += 1
                if groups and nm % 3 != 0:
                    out += groups.pop(0)
        for g in groups:
            out += g
        return out

    def interval(role, j):
        extra = []
        if j == 2:
            extra = dma_stage(2, pitch)
        E = epi_mlp(j - 1, acc[(j - 1) % 2])
        csl = colsum() if (j % 2 == 0 and role == CSROLE) else []
        newstage = (j % 2 == 0)
        nxt = j + 1 if (j % 2 == 0 and j < 5) else None
        if SCHEME == "u":
            main = block_main(j, acc[j % 2], nxt)
            if newstage:
                main = first_reads(j) + main
            fill = spread(spread(E, csl), extra)
            emit_list(a, merge(main, fill, budget=22, start=1))
        elif role == 0:
            E2 = spread(E, extra)
            if newstage:
                E2 = E2[:-8] + first_reads(j) + E2[-8:]
            emit_list(a, E2)
            a("s_setprio 1")
            emit_list(a, weave(block_main(j, acc[j % 2], nxt), csl))
            a("s_setprio 0")
        else:
            a("s_setprio 1")
            main = block_main(j, acc[j % 2], None)
            if newstage:
                main = first_reads(j) + main
            emit_list(a, weave(merge(main, extra, budget=3, start=2), csl))
            a("s_setprio 0")
            E2 = E
            if nxt is not None:
                E2 = E2[:-8] + first_reads(nxt) + E2[-8:]
            emit_list(a, E2)
        if csl:
            emit_list(a, colsum_fin(j // 2))
        if j < 5:
            if j == 1:
                a.wait_tag("D1")
            if j == 3:
                a.wait_tag("D2")
            a.waitcnt(lg=(0 if j % 2 == 0 else None))
            a("s_barrier")

    def mlp_rest(role):
        after_arrival(role)
        for j in range(1, 6):
            T(a)
            interval(role, j)
        T(a)
        emit_list(a, epi_mlp(5, acc[1]))
        T.dump(a, sWS, sWv, 8, vT)
        a("s_endpgm")

    if True:
        a(f"s_cmp_ge_u32 s{sWv}, 4")
        a("s_cbranch_scc1 k1_mlp_r1")
        st_r = a.save()
        nr = T.n
        mlp_rest(0)
        a.label("k1_mlp_r1")
        a.restore(st_r)
        T.n = nr
        mlp_rest(1)

    a.label("k1_qkv")
    a.restore(st_branch)
    T.n = 1
    pitch = 3456
    srd(a, sW, 6, 7, 576 * 3456)
    srd(a, sB, 12, 13, 576 * 2)
    a(f"s_lshl_b32 s{sQc}, s{sS}, 1")
    a(f"s_add_u32 s{sQc}, s{sQc}, s{sCl}")
    a(f"s_sub_u32 s{sQc}, s{sQc}, 6")
    a(f"s_mul_i32 s{sFb}, s{sQc}, 7")
    a(f"s_min_u32 s{sFb}, s{sFb}, 48")
    a(f"s_mul_i32 s{sDW}, s{sWv}, {8 * pitch}")
    a(f"s_lshl_b32 s{sT}, s{sFb}, 6")
    a(f"s_add_u32 s{sDW}, s{sDW}, s{sT}")
    a(f"v_mul_u32_u24 v{t0}, {pitch}, v{t0}")
    a(f"v_add_u32 v{vOffB}, v{vOffB}, v{t0}")
    a(f"s_lshl_b32 s{sScale}, s{sFb}, 6")
    w_prefetch(pitch, sScale, 3)
    emit_list(a, dma_stage(0, pitch))
    common_late()
    a(f"s_mul_i32 s{sSt}, s{sMb}, 108")
    a(f"s_lshl_b32 s{sT}, s{sFb}, 1")
    a(f"s_add_u32 s{sSt}, s{sSt}, s{sT}")
    a(f"s_lshl_b32 s{sSt}, s{sSt}, 10")
    a(f"s_add_u32 s{sSt}, s{sSt}, {hx(QKV_OFF)}")
    vB2 = vCsF[0]
    own_setup(pitch)
    T(a)
    for n in range(2):
        a_step(n)
        a_refill(n)
    a.wait_tag("D0")
    a("s_barrier")
    T(a)
    def rd2(f):
        return b_reads(f % 2, f // 2, f % RB)
    for f in range(RB - 1):
        emit_list(a, rd2(f))
    def step2(f):
        if f + RB - 1 < 72:
            emit_list(a, rd2(f + RB - 1))
        a(mfma(f % 2, f // 2, f % RB, acc[f % 2]))
    done = 0
    for n in range(2, 9):
        a_step(n)
        upto = 8 * n if n > 2 else 16
        for f in range(done, upto):
            step2(f)
            if f == done + 1:
                a_refill(n, nlater=4)
        done = upto
        if n in (4,):
            T(a)
    for f in range(done, 72):
        step2(f)
    T(a)

    def epi_qkv(j, ac):
        o = [f"s_add_u32 s{sT2}, s{sFb}, {j}",
             f"s_cmp_lt_u32 s{sT2}, 18",
             f"s_cselect_b32 s{sScale}, {hx(f2u(QSCALE))}, 1.0"]
        for i in range(16):
            o.append(f"v_mul_f32 v{ac+i}, s{sScale}, v{ac+i}")
        for u in range(2):
            o += [f"v_cvt_pk_bf16_f32 v{ac+8*u+e}, v{ac+8*u+2*e}, v{ac+8*u+2*e+1}" for e in range(4)]
            o.append((f"buffer_store_dwordx4 {v(ac + 8*u, 4)}, v{vSt}, s[{sWS}:{sWS+3}], s{sSt} offen offset:{u*1024}", "ST"))
        o.append(f"s_add_u32 s{sSt}, s{sSt}, 2048")
        return o

    emit_list(a, epi_qkv(0, acc[0]))
    a.wait_tag("D1")
    a("s_barrier")
    emit_list(a, first_reads(2))
    st6 = None
    for j in range(2, 7):
        if j == 6:
            a(f"s_cmp_ge_u32 s{sQc}, 6")
            a("s_cbranch_scc1 k1_tail6")
            st6 = a.save()
            n6 = T.n
        T(a)
        main = block_main(j, acc[j % 2], j + 1 if j < 6 else None)
        fill = epi_qkv(j - 1, acc[(j - 1) % 2])
        if j == 2:
            fill += dma_stage(2, pitch)
        if j == 4:
            fill += dma_stage(3, pitch)
        emit_list(a, merge(main, fill, budget=12, start=1))
        if j == 2:
            a.wait_tag("D2")
            a("s_barrier")
        if j == 3:
            a("s_barrier")
        if j == 4:
            a.wait_tag("D3")
            a("s_barrier")
    emit_list(a, epi_qkv(6, acc[0]))
    T.dump(a, sWS, sWv, 8, vT)
    a("s_endpgm")

    a.label("k1_tail6")
    a.restore(st6)
    emit_list(a, epi_qkv(5, acc[1]))
    T.n = n6
    T.dump(a, sWS, sWv, 8, vT)
    a(f"s_cmp_lg_u32 s{sQc}, 7")
    a("s_cbranch_scc1 k1_flags")
    st7 = a.save()
    a(f"v_lshrrev_b32 v{t0}, 5, v{vLane}")
    a(f"v_lshlrev_b32 v{t0}, 5, v{t0}")
    a(f"v_mov_b32 v{t2}, 0")
    a(f"v_mov_b32 v{t3}, 0")
    gbuf = [acc[0] + 4 * i for i in range(4)] + [vB + 4 * i for i in range(4)] + [vB2 + 4 * i for i in range(4)]
    for base in range(0, 36, 12):
        for i in range(12):
            m = base + i
            a(f"buffer_load_dwordx4 {v(gbuf[i], 4)}, v{t0}, s[{sB}:{sB+3}], 0 offen offset:{64*(m//2) + 16*(m%2)}")
        for i in range(12):
            m = base + i
            for e in range(4):
                r = t2 + (e % 2)
                a(f"v_dot2_f32_bf16 v{r}, v{vA + 4*m + e}, v{gbuf[i] + e}, v{r}")
    a(f"v_add_f32 v{t2}, v{t2}, v{t3}")
    a(f"v_mov_b32 v{t3}, v{t2}")
    a(f"v_permlane32_swap_b32 v{t2}, v{t3}")
    a(f"v_add_f32 v{t2}, v{t2}, v{t3}")
    a(f"v_mul_f32 v{t2}, {hx(f2u(-LOG2E))}, v{t2}")
    a(f"v_exp_f32 v{t2}, v{t2}")
    a(f"v_add_f32 v{t2}, 1.0, v{t2}")
    a(f"v_rcp_f32 v{t2}, v{t2}")
    a(f"v_and_b32 v{t0}, 31, v{vLane}")
    a(f"v_lshlrev_b32 v{t0}, 2, v{t0}")
    a(f"s_lshl_b32 s{sT}, s{sMb}, 7")
    a(f"s_add_u32 s{sT}, s{sT}, {hx(G_OFF)}")
    a(f"buffer_store_dword v{t2}, v{t0}, s[{sWS}:{sWS+3}], s{sT} offen")
    a("s_endpgm")
    a.label("k1_flags")
    a.restore(st7)
    a(f"s_cmp_lg_u32 s{sMb}, 0")
    a("s_cbranch_scc1 k1_end")
    a(f"v_lshlrev_b32 v{t0}, 7, v{vLane}")
    a(f"v_mov_b32 v{t2}, 0")
    a(f"s_mov_b32 s{sT}, {hx(F_OFF)}")
    a(f"buffer_store_dword v{t2}, v{t0}, s[{sWS}:{sWS+3}], s{sT} offen")
    a.label("k1_end")
    a("s_endpgm")
    a.label("k1_code_end")
    return V.hi


HEADER = """; Kernarg layout for this problem (96 bytes, ptrs only, base s[0:1]):
"""


def main(out, kernels=("k1",)):
    a = Asm()
    launches = []
    descs = []
    body = []
    if "k1" in kernels:
        a = Asm()
        nv = gen_k1(a)
        launches.append(f"; @launch kernel=k1_kernel grid=(256,1,1) block=(512,1,1) lds={K1_LDS}")
        descs.append(kernel_desc("k1_kernel", nv))
        body.append(a.text())
        print("k1: vgprs", nv, a.stats, file=sys.stderr)
    import gen2
    if gen2 is not None:
        for kn in kernels:
            if kn == "k1":
                continue
            a = Asm()
            nv, launch = getattr(gen2, "gen_" + kn)(a)
            launches.append(launch)
            descs.append(kernel_desc(kn + "_kernel", nv))
            body.append(a.text())
            print(kn, ": vgprs", nv, a.stats, file=sys.stderr)
    txt = HEADER + "\n".join(launches) + "\n" + '.amdgcn_target "amdgcn-amd-amdhsa--gfx950"\n.text\n' + "".join(body) + "all_code_end:\n" + "".join(descs)
    open(out, "w").write(txt)


if __name__ == "__main__":
    sys.modules["gen"] = sys.modules["__main__"]
    out = sys.argv[1] if len(sys.argv) > 1 else f"cdna_kernels/{NAME}.s"
    ks = sys.argv[2].split(",") if len(sys.argv) > 2 else ["k1"]
    main(out, ks)
```

```python
import os
from asmlib import *
from gen import *
import gen

U = 8192
MISC = 19 * U
SX_OFF = MISC
B1_OFF = MISC + 4096
REC_OFF = MISC + 6144
P1_LDS = 163840


GL = [[0, 10, 1], [2, 3, 4], [5, 6, 7], [8, 9, 11], [12, 13, 14], [15, 16, 17]]


def bunit(p, n):
    if p == 0:
        return 1 + n
    k = 3 * p + n // 3
    return GL[(k - 3) % 6][n % 3]


def apair(n):
    return (11 + 2 * (n % 4)) * U


def gen_m1(a):
    L = "m1_kernel"
    a.raw(".p2align 8")
    a.raw(f".globl {L}")
    a.raw(f".type {L},@function")
    a.label(L)
    V = Regs("v", 1, 256)
    vA = V.alloc(144, 4)
    acc = [V.alloc(16, 4), V.alloc(16, 4)]
    RB = int(os.environ.get("RB", "6"))
    vB = V.alloc(4 * RB, 4)
    vCsF = [V.alloc(4, 4), V.alloc(4, 4)]
    vCsAcc = V.alloc(4, 4)
    vSel = V.alloc(4, 4)
    vTm = V.alloc(8, 4)
    vRec = V.alloc(4, 4)
    vXr = V.alloc(4, 4)
    vT = V.alloc(4, 4)
    vRd = [V.alloc(), V.alloc(), V.alloc()]
    vOffB = V.alloc()
    vCsRd = V.alloc()
    vE = V.alloc()
    vSt = V.alloc()
    vCsA = V.alloc()
    vB1A = V.alloc()
    vK1 = V.alloc()
    vK2 = V.alloc()
    vSd = V.alloc()
    vLane = V.alloc()
    vDum = V.alloc()
    vPfW = V.alloc()
    vS = [vXr, vXr + 2]
    vSS = [vXr + 1, vXr + 3]
    vARd = vTm
    vOffA = [vTm + 4, vTm + 5]
    vSX = vTm + 6
    sX, sW, sB, sWS = 16, 20, 24, 28
    sWv, sA0, sAM, sDW, sM, sSt, sT, sT2, sOnes, sScale, sFb, sCk = 32, 33, 34, 35, 36, 37, 38, 39, 40, 41, 42, 43
    sXcd, sIdx, sS, sI, sCl, sMb, sRg, sCh = 44, 45, 46, 47, 48, 49, 50, 51
    t0, t1, t2, t3 = vT, vT + 1, vT + 2, vT + 3
    sP2, sP3 = 4, 8

    a("s_cmp_ge_u32 s2, 256")
    a("s_cbranch_scc1 m1_end")
    T = Stamps(0)
    T.start(a)
    a("s_load_dwordx4 s[4:7], s[0:1], 0")
    a("s_load_dwordx4 s[8:11], s[0:1], 32")
    a("s_load_dwordx2 s[12:13], s[0:1], 64")
    a("s_load_dwordx2 s[14:15], s[0:1], 88")
    a("s_load_dwordx2 s[96:97], s[0:1], 48")
    a("s_load_dwordx2 s[98:99], s[0:1], 16")
    a(f"v_lshrrev_b32 v{vT}, 6, v0")
    a(f"v_and_b32 v{vLane}, 63, v0")
    a(f"v_readfirstlane_b32 s{sWv}, v{vT}")
    a(f"s_and_b32 s{sXcd}, s2, 7")
    a(f"s_lshr_b32 s{sIdx}, s2, 3")
    a(f"s_and_b32 s{sS}, s{sXcd}, 3")
    a(f"s_lshr_b32 s{sT}, s{sXcd}, 2")
    a(f"s_lshl_b32 s{sT}, s{sT}, 3")
    a(f"s_and_b32 s{sI}, s{sIdx}, 7")
    a(f"s_add_u32 s{sI}, s{sI}, s{sT}")
    a(f"s_lshr_b32 s{sCl}, s{sIdx}, 3")
    a(f"v_lshrrev_b32 v{t0}, 3, v{vLane}")
    a(f"v_and_b32 v{t1}, 7, v{vLane}")
    a(f"v_lshrrev_b32 v{t2}, 1, v{t0}")
    a(f"v_xor_b32 v{t1}, v{t1}, v{t2}")
    a(f"v_mul_u32_u24 v{t0}, 1152, v{t0}")
    a(f"v_lshl_add_u32 v{vOffA[0]}, v{t1}, 4, v{t0}")
    a(f"v_xor_b32 v{vOffA[1]}, 64, v{vOffA[0]}")
    a(f"s_lshl_b32 s{sT}, s{sI}, 3")
    a(f"s_add_u32 s{sT}, s{sT}, s{sWv}")
    a(f"s_mul_i32 s{sA0}, s{sT}, {16*1152}")
    a(f"s_lshl_b32 s{sAM}, s{sWv}, 11")
    a(f"s_lshl_b32 s{sM}, s{sWv}, 10")
    a(f"v_lshrrev_b32 v{vE}, 5, v{vLane}")
    a(f"v_bfe_u32 v{t0}, v{vLane}, 2, 2")
    a(f"v_and_b32 v{t3}, 3, v{vLane}")
    a(f"v_bfe_u32 v{t2}, v{vLane}, 4, 1")
    a(f"v_lshl_add_u32 v{t1}, v{vE}, 2, v{t0}")
    a(f"v_lshlrev_b32 v{vOffB}, 6, v{t2}")
    a(f"v_lshl_add_u32 v{vOffB}, v{t3}, 4, v{vOffB}")
    a(f"s_cmp_eq_u32 s{sCl}, 3")
    a(f"s_movk_i32 s{sT2}, 9216")
    a(f"s_cselect_b32 s{sT2}, 3456, s{sT2}")
    a(f"v_mul_lo_u32 v{t1}, s{sT2}, v{t1}")
    a(f"v_add_u32 v{vOffB}, v{vOffB}, v{t1}")
    a(f"s_mul_i32 s{sDW}, s{sWv}, s{sT2}")
    a(f"s_lshl_b32 s{sDW}, s{sDW}, 3")
    a.waitcnt(lg=0)
    srd(a, sX, 4, 5, 2048 * 1152)

    def a_dma(n):
        out = []
        for o in range(2):
            out += [f"s_add_u32 m0, s{sAM}, {apair(n) + o * 1024}",
                    f"s_add_u32 s{sT2}, s{sA0}, {o * 8 * 1152 + n * 128}",
                    (f"buffer_load_dwordx4 v{vOffA[o]}, s[{sX}:{sX+3}], s{sT2} offen lds", f"C{n}")]
        return out

    emit_list(a, a_dma(0))
    PFX = int(os.environ.get("PFX", "1"))
    PFW = int(os.environ.get("PFW", "1"))
    if PFX:
        a(f"s_lshl_b32 s{sT}, s{sI}, 4")
        a(f"s_lshl_b32 s{sT2}, s{sS}, 2")
        a(f"s_add_u32 s{sT}, s{sT}, s{sT2}")
        a(f"s_add_u32 s{sT}, s{sT}, s{sCl}")
        a(f"s_lshl_b32 s{sT}, s{sT}, 3")
        a(f"s_add_u32 s{sT}, s{sT}, s{sWv}")
        a(f"s_mul_i32 s{sT}, s{sT}, {9*128}")
        a(f"v_min_u32 v{vPfW}, 8, v{vLane}")
        a(f"v_lshlrev_b32 v{vPfW}, 7, v{vPfW}")
        a(f"buffer_load_dword v{vDum}, v{vPfW}, s[{sX}:{sX+3}], s{sT} offen", "PF")
    a(f"s_cmp_eq_u32 s{sCl}, 3")
    a("s_cbranch_scc1 m1_qkv")
    st_branch = a.save()
    pitch = [9216]

    def dma(p, n, dw=0):
        return [f"s_add_u32 m0, s{sM}, {bunit(p, n) * U + dw * 1024}",
                f"s_add_u32 s{sT}, s{sDW}, {p * 128 + (n * 64 + dw * 8) * pitch[0]}",
                (f"buffer_load_dwordx4 v{vOffB}, s[{sW}:{sW+3}], s{sT} offen lds", f"C{n}" if p == 0 else f"G{3*p + n//3}")]

    def dma_stage(p, dw=0):
        return sum((dma(p, n, dw) for n in range(9)), [])

    def w_touch(nst, scol):
        if not PFW:
            return
        a(f"s_min_u32 s{sT}, s{sWv}, {nst-1}")
        a(f"s_lshl_b32 s{sT}, s{sT}, 7")
        a(f"s_add_u32 s{sT}, s{sT}, s{scol}")
        a(f"s_mul_i32 s{sT2}, s{sI}, {36*pitch[0]}")
        a(f"s_add_u32 s{sT}, s{sT}, s{sT2}")
        a(f"v_min_u32 v{vPfW}, 35, v{vLane}")
        a(f"v_mul_u32_u24 v{vPfW}, {pitch[0]}, v{vPfW}")
        a(f"buffer_load_dword v{vDum}, v{vPfW}, s[{sW}:{sW+3}], s{sT} offen", "PF")

    def w2_touch():
        if not int(os.environ.get("PF2", "1")):
            return []
        o = [f"s_mul_i32 s{sT}, s{sS}, {1152*1152}",
             f"s_mul_i32 s{sT2}, s{sIdx}, {324*128}",
             f"s_add_u32 s{sT}, s{sT}, s{sT2}",
             f"s_mul_i32 s{sT2}, s{sWv}, {41*128}",
             f"s_add_u32 s{sT}, s{sT}, s{sT2}",
             f"v_min_u32 v{vPfW}, 40, v{vLane}",
             f"v_lshlrev_b32 v{vPfW}, 7, v{vPfW}",
             (f"buffer_load_dword v{vDum}, v{vPfW}, s[{sP2}:{sP2+3}], s{sT} offen", "PF"),
             f"s_mul_i32 s{sT}, s{sS}, {144*1152}",
             f"s_mul_i32 s{sT2}, s{sIdx}, {41*128}",
             f"s_add_u32 s{sT}, s{sT}, s{sT2}",
             f"s_mul_i32 s{sT2}, s{sWv}, {6*128}",
             f"s_add_u32 s{sT}, s{sT}, s{sT2}",
             f"v_min_u32 v{vPfW}, {5*128}, v{vPfW}",
             (f"buffer_load_dword v{vDum}, v{vPfW}, s[{sP3}:{sP3+3}], s{sT} offen", "PF")]
        return o

    def first_dmas():
        emit_list(a, dma(0, 0) + a_dma(1) + dma(0, 1) + a_dma(2) + dma(0, 2))

    def common_late():
        code_prefetch(a, t1, vDum, 92, 12, "all_code_end", sIdx, "m1_here%d" % len(a.out), begin="m1_kernel", lines=20)
        srd(a, sWS, 14, 15, gen.WS_SIZE)
        srd(a, sP2, 96, 97, 4608 * 1152)
        srd(a, sP3, 98, 99, 576 * 1152)
        a(f"s_and_b32 s{sRg}, s{sWv}, 3")
        a(f"s_lshr_b32 s{sCh}, s{sWv}, 2")
        a(f"s_lshl_b32 s{sMb}, s{sI}, 2")
        a(f"s_add_u32 s{sMb}, s{sMb}, s{sRg}")
        a(f"v_lshlrev_b32 v{vCsRd}, 6, v{t0}")
        a(f"v_lshl_add_u32 v{vCsRd}, v{t3}, 3, v{vCsRd}")
        a(f"v_lshl_add_u32 v{vRd[0]}, v{t2}, 5, v{vCsRd}")
        a(f"v_lshl_add_u32 v{vRd[0]}, v{vE}, 11, v{vRd[0]}")
        a(f"s_lshl_b32 s{sT}, s{sCh}, 8")
        a(f"v_add_u32 v{vRd[0]}, s{sT}, v{vRd[0]}")
        a(f"v_add_u32 v{vRd[1]}, 0x10000, v{vRd[0]}")
        a(f"v_add_u32 v{vRd[2]}, 0x20000, v{vRd[0]}")
        a(f"v_and_b32 v{t0}, 31, v{vLane}")
        a(f"v_bfe_u32 v{t1}, v{t0}, 1, 3")
        a(f"v_lshlrev_b32 v{t2}, 1, v{vE}")
        a(f"v_xor_b32 v{t1}, v{t1}, v{t2}")
        a(f"v_lshlrev_b32 v{t1}, 4, v{t1}")
        a(f"v_lshl_add_u32 v{t1}, v{t0}, 7, v{t1}")
        a(f"s_lshl_b32 s{sT}, s{sRg}, 12")
        a(f"s_add_u32 s{sT}, s{sT}, {apair(0)}")
        a(f"v_add_u32 v{vARd}, s{sT}, v{t1}")
        a(f"v_xor_b32 v{vARd+1}, 16, v{vARd}")
        a(f"v_xor_b32 v{vARd+2}, 64, v{vARd}")
        a(f"v_xor_b32 v{vARd+3}, 80, v{vARd}")
        a(f"v_lshlrev_b32 v{vSt}, 4, v{vLane}")

    def a_reads(n):
        return [f"ds_read_b128 {v(vA + 16*n + 4*i, 4)}, v{vARd + i} offset:{apair(n) - apair(0)}" for i in range(4)]

    NR = RB + 2
    assert vCsF[0] == vB + 4 * RB
    ring = [0]
    cswin = [0]

    def b_reads(p, m, slot):
        t, vv = m // 2, m % 2
        o = bunit(p, t // 2) * U + (4 * (t % 2) + vv) * 1024
        w, o = o >> 16, o & 0xffff
        return [f"ds_read_b64_tr_b16 {v(vB + 4*slot + 2*z, 2)}, v{vRd[w]} offset:{o + 512*z}" for z in range(2)]

    def mfma(m, slot, ac):
        return f"{MF32} {v(ac, 16)}, {v(vB + 4*slot, 4)}, {v(vA + 4*m, 4)}, {'0' if m == 0 else v(ac, 16)}"

    def cs_rd(p, m, slot):
        o = bunit(p, m // 2) * U + (m % 2) * 4096
        w, o = o >> 16, o & 0xffff
        out = []
        if w != cswin[0]:
            out.append(f"v_add_u32 v{vCsRd}, {hx((w - cswin[0]) << 16)}, v{vCsRd}")
            cswin[0] = w
        return out + [f"ds_read_b64_tr_b16 {v(vB + 4*slot + 2*z, 2)}, v{vCsRd} offset:{o + z*512}" for z in range(2)]

    def cs_mf(m, slot):
        return f"{MF16} {v(vCsAcc, 4)}, {v(vSel, 4)}, {v(vB + 4*slot, 4)}, {'0' if m == 0 else v(vCsAcc, 4)}"

    def ops(p, ac, m0, m1, cs):
        out = []
        for m in range(m0, m1):
            sl = ring[0]; ring[0] = (sl + 1) % NR
            out.append((b_reads(p, m, sl), mfma(m, sl, ac)))
            if cs and m - m0 < (m1 - m0) // 2:
                c = m0 // 2 + (m - m0)
                sl = ring[0]; ring[0] = (sl + 1) % NR
                out.append((cs_rd(p, c, sl), cs_mf(c, sl)))
        return out

    def pipe(op, depth=None):
        d = NR - 1 if depth is None else depth
        first = sum((op[i][0] for i in range(min(d, len(op)))), [])
        main = []
        for i in range(len(op)):
            if i + d < len(op):
                main += op[i + d][0]
            main.append(op[i][1])
        return first, main

    def spread(fill, extra, group=3, frac=1.0):
        ng = (len(extra) + group - 1) // group
        if ng == 0:
            return fill
        step = max(1, int(len(fill) * frac) // (ng + 1))
        out, k = [], 0
        for i, e in enumerate(fill):
            out.append(e)
            if (i + 1) % step == 0 and k < ng:
                out += extra[group * k:group * k + group]
                k += 1
        out += extra[group * k:]
        return out

    def arrival_dma(n):
        out = []
        if n + 3 < 9:
            out += a_dma(n + 3) + dma(0, n + 3)
        else:
            for k in range(3 * (n - 6), 3 * (n - 6) + 3):
                out += dma(1, k)
        return out

    def cs_pre(p):
        return [f"ds_read_b32 v{t3}, v{vB1A} offset:{p*256}"]

    def cs_fin(p):
        c = vCsAcc
        return [f"v_cvt_pk_bf16_f32 v{t0}, v{c}, v{c}",
                f"v_and_b32 v{t1}, 0xffff0000, v{t0}",
                f"v_sub_f32 v{t1}, v{c}, v{t1}",
                f"v_cvt_pk_bf16_f32 v{t1}, v{t1}, v{t3}",
                f"v_lshrrev_b32 v{t2}, 16, v{t3}",
                f"v_mov_b32 v{t3}, 0",
                f"ds_write_b128 v{vCsA}, {v(t0, 4)} offset:{(p % 2)*1024}"]

    def rec_rd(p):
        return [f"ds_read_b128 {v(vRec, 4)}, v{vE} offset:{(p % 2)*1024}"]

    def rec_mf(ac):
        return [f"{MF32} {v(ac, 16)}, {v(vRec, 4)}, {v(vXr, 4)}, {v(ac, 16)}"]

    def stats(n, ch):
        o, k = [], 0
        for r in range(vA + 16 * n + 8 * ch, vA + 16 * n + 8 * ch + 8):
            o.append(f"v_dot2_f32_bf16 v{vS[k]}, v{r}, s{sOnes}, v{vS[k]}")
            o.append(f"v_dot2_f32_bf16 v{vSS[k]}, v{r}, v{r}, v{vSS[k]}")
            k ^= 1
        return o

    def stats_fin():
        o = [f"ds_read_b64 {v(t2, 2)}, v{vSX}"]
        o.append(f"v_add_f32 v{t0}, v{vS[0]}, v{t2}")
        o.append(f"v_add_f32 v{t2}, v{vSS[0]}, v{t3}")
        o.append(f"v_mov_b32 v{t1}, v{t0}")
        o.append(f"v_mov_b32 v{t3}, v{t2}")
        o.append(f"v_permlane32_swap_b32 v{t0}, v{t1}")
        o.append(f"v_permlane32_swap_b32 v{t2}, v{t3}")
        o.append(f"v_add_f32 v{t0}, v{t0}, v{t1}")
        o.append(f"v_add_f32 v{t2}, v{t2}, v{t3}")
        o.append(f"v_mul_f32 v{t0}, {hx(f2u(-1.0/576))}, v{t0}")
        o.append(f"v_mul_f32 v{t2}, {hx(f2u(1.0/576))}, v{t2}")
        o.append(f"v_fma_f32 v{t2}, -v{t0}, v{t0}, v{t2}")
        o.append(f"v_max_f32 v{t2}, 0, v{t2}")
        o.append(f"v_add_f32 v{t2}, {hx(f2u(1e-5))}, v{t2}")
        o.append(f"v_rsq_f32 v{t3}, v{t2}")
        o.append(f"v_cvt_pk_bf16_f32 v{t1}, v{t0}, v{t0}")
        o.append(f"v_mul_f32 v{vSd}, v{t2}, v{t3}")
        o.append(f"v_mul_f32 v{vK1}, {hx(f2u(GC1))}, v{t3}")
        o.append(f"v_mul_f32 v{vK2}, v{t3}, v{t3}")
        o.append(f"v_mul_f32 v{vK2}, v{vK2}, v{t3}")
        o.append(f"v_mul_f32 v{vK2}, {hx(f2u(GC2))}, v{vK2}")
        o.append(f"v_and_b32 v{t1}, 0xffff0000, v{t1}")
        o.append(f"v_sub_f32 v{t2}, v{t0}, v{t1}")
        o.append(f"v_cvt_pk_bf16_f32 v{vXr}, v{t1}, v{t2}")
        o.append(f"v_cvt_pk_bf16_f32 v{vXr+1}, v{t1}, v{vSd}")
        o.append(f"v_and_b32 v{t2}, 0xffff0000, v{vXr+1}")
        o.append(f"v_sub_f32 v{t2}, v{vSd}, v{t2}")
        o.append(f"v_mov_b32 v{vXr+3}, 0")
        o.append(f"v_cvt_pk_bf16_f32 v{vXr+2}, v{t2}, v{vXr+3}")
        o.append(f"v_cmp_gt_u32 vcc, 32, v{vLane}")
        for i in range(3):
            o.append(f"v_cndmask_b32_e64 v{vXr+i}, 0, v{vXr+i}, vcc")
        return o

    def epi_mlp(p, ac):
        o = []
        for u in range(2):
            x = ac + 8 * u
            R = range(8)
            o += [f"v_mul_f32 v{vTm+e}, v{x+e}, v{x+e}" for e in R]
            o += [f"v_fma_f32 v{vTm+e}, v{vTm+e}, v{vK2}, v{vK1}" for e in R]
            o += [f"v_mul_f32 v{vTm+e}, v{vTm+e}, v{x+e}" for e in R]
            o += [f"v_exp_f32 v{vTm+e}, v{vTm+e}" for e in R]
            o += [f"v_fma_f32 v{vTm+e}, v{vTm+e}, v{vSd}, v{vSd}" for e in R]
            o += [f"v_rcp_f32 v{vTm+e}, v{vTm+e}" for e in R]
            o += [f"v_mul_f32 v{x+e}, v{x+e}, v{vTm+e}" for e in R]
            o += [f"v_cvt_pk_bf16_f32 v{x+e}, v{x+2*e}, v{x+2*e+1}" for e in range(4)]
            o.append((f"buffer_store_dwordx4 {v(x, 4)}, v{vSt}, s[{sWS}:{sWS+3}], s{sSt} offen offset:{u*1024}{SMOD}", "ST"))
        o.append(f"s_add_u32 s{sSt}, s{sSt}, 4096")
        if os.environ.get("NOTR"):
            o = [x.replace("v_exp_f32", "v_mov_b32").replace("v_rcp_f32", "v_mov_b32") if isinstance(x, str) else x for x in o]
        if os.environ.get("NOE"):
            o = [x for x in o if not isinstance(x, str) or x.startswith(("v_cvt", "s_add"))]
        return o

    def gdma(k, last):
        if k > last:
            return []
        return sum((dma(k // 3, 3 * (k % 3) + i) for i in range(3)), [])

    def stages(p0, p1, fillf, budget, cs, last, mark=None, lastconf=None):
        op = []
        for p in range(p0, p1):
            for g in range(3):
                op += ops(p, acc[p % 2], 12 * g, 12 * g + 12, cs)
        fr, main = pipe(op)
        emit_list(a, fr)
        groups, cur, n = [], [], 0
        for e in main:
            cur.append(e)
            if e.startswith(MF32):
                n += 1
                if n % 12 == 0:
                    groups.append(cur)
                    cur = []
        assert not cur
        for gi, body in enumerate(groups):
            p, g = p0 + gi // 3, gi % 3
            k = 3 * p + g
            if g == 0:
                if mark:
                    mark(p)
                if os.environ.get("PRIO") and cs is not None and p == p0:
                    a(f"s_setprio {1 if cs else 0}")
                fill = fillf(p)
                nfill = len(fill)
            d = gdma(k + 5, last) if k >= 4 else []
            if k == 3:
                d = gdma(6, last) + gdma(7, last)
            if k == 4:
                d = gdma(8, last) + d
            part = fill[g * nfill // 3:(g + 1) * nfill // 3]
            if g == 0:
                ku = [i for i, e in enumerate(part) if isinstance(e, str) and e.startswith("v_mfma")]
                ku = ku[0] + 1 if ku else 0
                part = part[:ku] + d[:9] + spread(part[ku:], d[9:], frac=0.8)
            else:
                part = spread(part, d, frac=0.8) if part else d
            if cs and g == 2:
                part = part[:len(part) // 2] + cs_pre(p) + part[len(part) // 2:] + cs_fin(p)
            cost = sum((Ins(e[0] if isinstance(e, tuple) else e).cost if (e[0] if isinstance(e, tuple) else e).startswith("v_") else 1) for e in part)
            nm16 = sum(1 for e in body if e.startswith(MF16))
            b = max(budget, cost / (11.5 + 0.35 * nm16) + 1)
            emit_list(a, merge(body, part, budget=b, start=0))
            if k < last or cs is not None:
                a.wait_tag(f"G{k+2}")
                if lastconf and gi == len(groups) - 1:
                    a.wait_tag(f"G{lastconf}")
                if cs and g == 2:
                    a.waitcnt(lg=0)
                a("s_barrier")

    CSROLE = int(os.environ.get("CSROLE", "1"))
    STI = [int(x) for x in os.environ.get("STI", "")]
    DR0 = int(os.environ.get("DR0", "0"))
    BUD = float(os.environ.get("BUD", "8"))
    NR0 = int(os.environ.get("NR0", "6"))
    PF2P = int(os.environ.get("PF2P", "3"))
    HOLD = int(os.environ.get("HOLD", "4"))
    DFRAC = float(os.environ.get("DFRAC", "0.8"))

    srd(a, sW, 8, 9, 576 * 9216)
    a(f"s_mul_i32 s{sCk}, s{sS}, 3")
    a(f"s_add_u32 s{sCk}, s{sCk}, s{sCl}")
    a(f"s_mul_i32 s{sFb}, s{sCk}, 768")
    a(f"s_add_u32 s{sDW}, s{sDW}, s{sFb}")
    srd(a, sB, 10, 11, 4608 * 2)
    a(f"v_lshlrev_b32 v{t1}, 1, v0")
    a(f"buffer_load_ushort v{vCsAcc}, v{t1}, s[{sB}:{sB+3}], s{sFb} offen")
    w_touch(6, sFb)
    first_dmas()
    common_late()
    a(f"s_mov_b32 s{sOnes}, 0x3f803f80")
    a(f"s_mul_i32 s{sSt}, s{sMb}, 288")
    a(f"s_mul_i32 s{sT}, s{sCk}, 24")
    a(f"s_add_u32 s{sSt}, s{sSt}, s{sT}")
    a(f"s_lshl_b32 s{sT}, s{sCh}, 1")
    a(f"s_add_u32 s{sSt}, s{sSt}, s{sT}")
    a(f"s_lshl_b32 s{sSt}, s{sSt}, 10")
    a(f"s_lshr_b32 s{sT}, s{sRg}, 1")
    a(f"s_lshl_b32 s{sT}, s{sT}, 8")
    a(f"s_and_b32 s{sT2}, s{sRg}, 1")
    a(f"s_lshl_b32 s{sT2}, s{sT2}, 5")
    a(f"s_add_u32 s{sT}, s{sT}, s{sT2}")
    a(f"v_lshrrev_b32 v{t0}, 4, v{vLane}")
    a(f"v_lshl_add_u32 v{vCsRd}, v{t0}, 10, v{vCsRd}")
    a(f"v_add_u32 v{vCsRd}, s{sT}, v{vCsRd}")
    a(f"v_and_b32 v{t0}, 15, v{vLane}")
    a(f"s_lshl_b32 s{sT2}, s{sRg}, 8")
    a(f"s_add_u32 s{sT2}, s{sT2}, {REC_OFF}")
    a(f"v_lshl_add_u32 v{vCsA}, v{t0}, 4, s{sT2}")
    a(f"s_lshl_b32 s{sT2}, s{sRg}, 6")
    a(f"s_add_u32 s{sT2}, s{sT2}, {B1_OFF}")
    a(f"v_lshl_add_u32 v{vB1A}, v{t0}, 2, s{sT2}")
    a(f"v_and_b32 v{t0}, 31, v{vLane}")
    a(f"s_lshl_b32 s{sT2}, s{sCh}, 9")
    a(f"s_add_u32 s{sT2}, s{sT2}, {REC_OFF}")
    a(f"v_lshl_add_u32 v{vE}, v{t0}, 4, s{sT2}")
    a(f"s_lshl_b32 s{sT2}, s{sWv}, 9")
    a(f"s_add_u32 s{sT2}, s{sT2}, {SX_OFF}")
    a(f"v_lshl_add_u32 v{vSX}, v{vLane}, 3, s{sT2}")
    for i in range(4):
        a(f"v_mov_b32 v{vSel+i}, s{sOnes}")
    for r in vS + vSS:
        a(f"v_mov_b32 v{r}, 0")
    a(f"v_lshlrev_b32 v{t2}, 2, v0")
    a(f"v_add_u32 v{t2}, {B1_OFF}, v{t2}")
    a(f"s_cmp_ge_u32 s{sWv}, 4")
    a("s_cbranch_scc1 m1_mlp_r1")
    st_r = a.save()
    nr = T.n

    def mlp(role):
        cswin[0] = 0
        ring[0] = 0
        T(a)
        for n in range(9):
            a.wait_tag(f"C{n}")
            a("s_barrier")
            if n in (0, 4):
                T(a)
            emit_list(a, a_reads(n))
            f, mm = pipe(ops(0, acc[0], 4 * n, 4 * n + 4, role == CSROLE))
            emit_list(a, f)
            if n == 0:
                a(f"v_lshlrev_b32 v{t3}, 16, v{vCsAcc}")
                a(f"ds_write_b32 v{t2}, v{t3}")
            dm = arrival_dma(n)
            st = stats(n - 1, role) if n > 0 else []
            emit_list(a, spread(st, dm) if st else dm)
            emit_list(a, mm)
        if role == CSROLE:
            emit_list(a, cs_pre(0))
        emit_list(a, stats(8, role))
        a(f"v_add_f32 v{vS[0]}, v{vS[0]}, v{vS[1]}")
        a(f"v_add_f32 v{vSS[0]}, v{vSS[0]}, v{vSS[1]}")
        a(f"ds_write_b64 v{vSX}, {v(vS[0], 2)}")
        a(f"v_xor_b32 v{vSX}, 2048, v{vSX}")
        if role == CSROLE:
            emit_list(a, cs_fin(0))
        a.wait_tag("G4", want_lg=True)
        a("s_barrier")
        cs = role == CSROLE and not os.environ.get("NOCS")
        ff = lambda p: rec_rd(p - 1) + (stats_fin() if p == 1 else []) + rec_mf(acc[(p - 1) % 2]) + epi_mlp(p - 1, acc[(p - 1) % 2])
        if SCHEME == "u":
            stages(1, 6, ff, BUD, cs, 17, mark=lambda p: T(a))
            T(a)
            emit_list(a, rec_rd(5) + rec_mf(acc[1]) + epi_mlp(5, acc[1]))
            T.dump(a, sWS, sWv, 8, vT)
            a("s_endpgm")
            return
        stages(1, 2, ff, BUD, cs, 8, mark=lambda p: T(a), lastconf=8)
        held = []
        for p in range(2, 6):
            T(a)
            if p < 5:
                ch = range(0, NR0) if role == 0 else range(NR0, 9)
                extra = sum((dma(p + 1, n, 0 if role == 0 else -4) + dma(p + 1, n, 4 if role == 0 else 0) for n in ch), [])
            else:
                extra = []
            E = epi_mlp(p - 1, acc[(p - 1) % 2])
            if p == PF2P:
                E = E + w2_touch()
            fr, main = pipe(ops(p, acc[p % 2], 0, 36, cs))
            if role == 0:
                emit_list(a, rec_rd(p - 1))
                emit_list(a, held)
                emit_list(a, rec_mf(acc[(p - 1) % 2]))
                if p in STI: T(a)
                a("s_setprio 0")
                E2 = extra[:9] + spread(E, extra[9:], frac=DFRAC)
                E2 = E2[:-12] + fr + E2[-12:]
                emit_list(a, E2)
                if p == 5:
                    a("s_barrier")
                    emit_list(a, rec_rd(5))
                if p in STI: T(a)
                a("s_setprio 1")
                held = []
                if p < 5 and HOLD:
                    main, held = main[:-HOLD], main[-HOLD:]
                    assert all(x.startswith(MF32) for x in held)
                emit_list(a, main)
                if p == 5:
                    emit_list(a, rec_mf(acc[1]))
                if p in STI: T(a)
            else:
                a("s_setprio 1")
                emit_list(a, fr + rec_rd(p - 1))
                if p in STI: T(a)
                k = [i for i, e in enumerate(main) if e.startswith(MF32)][2]
                main = main[:k + 1] + rec_mf(acc[(p - 1) % 2]) + main[k + 1:]
                k = [i for i, e in enumerate(main) if e.startswith(MF32)][-8]
                main = main[:k] + cs_pre(p) + main[k:k + 2] + cs_fin(p) + main[k + 2:]
                emit_list(a, main)
                if p == 5:
                    a.waitcnt(lg=0)
                    a("s_barrier")
                    emit_list(a, rec_rd(5))
                if p in STI: T(a)
                a("s_setprio 0")
                emit_list(a, extra[:6] + spread(E, extra[6:], frac=0.4))
                if p == 5:
                    a("s_setprio 2")
                    emit_list(a, rec_mf(acc[1]))
                if p in STI: T(a)
            if p < 5:
                a.wait_tag(f"G{3*p+5}")
                a.wait_tag(f"G{3*p+4}")
                a.wait_tag(f"G{3*p+3}")
                a.waitcnt(lg=0)
                a("s_barrier")
        a("s_setprio 0")
        T(a)
        emit_list(a, epi_mlp(5, acc[1]))
        T.dump(a, sWS, sWv, 8, vT)
        a("s_endpgm")
        return
        T(a)
        emit_list(a, rec_rd(5) + rec_mf(acc[1]) + epi_mlp(5, acc[1]))
        T.dump(a, sWS, sWv, 8, vT)
        a("s_endpgm")

    assert CSROLE == 1
    mlp(0)
    a.label("m1_mlp_r1")
    a.restore(st_r)
    T.n = nr
    mlp(1)

    a.label("m1_qkv")
    a.restore(st_branch)
    T.n = 1
    pitch[0] = 3456
    srd(a, sW, 6, 7, 576 * 3456)
    a(f"s_mul_i32 s{sFb}, s{sS}, 14")
    a(f"s_lshl_b32 s{sScale}, s{sFb}, 6")
    a(f"s_add_u32 s{sDW}, s{sDW}, s{sScale}")
    w_touch(7, sScale)
    first_dmas()
    srd(a, sB, 12, 13, 576 * 2)
    common_late()
    a(f"s_add_u32 s{sFb}, s{sFb}, s{sCh}")
    a(f"s_mul_i32 s{sSt}, s{sMb}, 108")
    a(f"s_lshl_b32 s{sT}, s{sFb}, 1")
    a(f"s_add_u32 s{sSt}, s{sSt}, s{sT}")
    a(f"s_lshl_b32 s{sSt}, s{sSt}, 10")
    a(f"s_add_u32 s{sSt}, s{sSt}, {hx(QKV_OFF)}")
    ring[0] = 0
    T(a)
    for n in range(9):
        a.wait_tag(f"C{n}")
        a("s_barrier")
        if n in (0, 4):
            T(a)
        emit_list(a, a_reads(n))
        f, mm = pipe(ops(0, acc[0], 4 * n, 4 * n + 4, False))
        emit_list(a, f)
        emit_list(a, arrival_dma(n))
        emit_list(a, mm)

    def epi_qkv(p, ac):
        o = [f"s_cmp_lt_i32 s{sFb}, {18 - 2*p}\n    s_cselect_b32 s{sScale}, {hx(f2u(QSCALE))}, 1.0"]
        for i in range(16):
            o.append(f"v_mul_f32 v{ac+i}, s{sScale}, v{ac+i}")
        for u in range(2):
            o += [f"v_cvt_pk_bf16_f32 v{ac+8*u+e}, v{ac+8*u+2*e}, v{ac+8*u+2*e+1}" for e in range(4)]
            o.append((f"buffer_store_dwordx4 {v(ac + 8*u, 4)}, v{vSt}, s[{sWS}:{sWS+3}], s{sSt} offen offset:{u*1024}{SMOD}", "ST"))
        o.append(f"s_add_u32 s{sSt}, s{sSt}, 4096")
        return o

    a.wait_tag("G4")
    a("s_barrier")
    stages(1, 6, lambda p: epi_qkv(p - 1, acc[(p - 1) % 2]) + (w2_touch() if p == PF2P else []), 3, None, 20, mark=lambda p: T(a))
    a(f"s_cmp_eq_u32 s{sS}, 3")
    a("s_cbranch_scc1 m1_tail6")
    st6 = a.save()
    n6 = T.n
    stages(6, 7, lambda p: epi_qkv(p - 1, acc[(p - 1) % 2]), 3, None, 20, mark=lambda p: T(a))
    emit_list(a, epi_qkv(6, acc[0]))
    T.dump(a, sWS, sWv, 8, vT)
    a("s_endpgm")

    a.label("m1_tail6")
    a.restore(st6)
    emit_list(a, epi_qkv(5, acc[1]))
    T.n = n6
    T.dump(a, sWS, sWv, 8, vT)
    a(f"s_cmp_eq_u32 s{sCh}, 0")
    a("s_cbranch_scc1 m1_flags")
    st7 = a.save()
    a(f"v_lshrrev_b32 v{t0}, 5, v{vLane}")
    a(f"v_lshlrev_b32 v{t0}, 5, v{t0}")
    a(f"v_mov_b32 v{t2}, 0")
    a(f"v_mov_b32 v{t3}, 0")
    gbuf = [acc[0] + 4 * i for i in range(4)] + [vB + 4 * i for i in range(4)] + [vCsF[0] + 4 * i for i in range(4)]
    for base in range(0, 36, 12):
        for i in range(12):
            m = base + i
            a(f"buffer_load_dwordx4 {v(gbuf[i], 4)}, v{t0}, s[{sB}:{sB+3}], 0 offen offset:{64*(m//2) + 16*(m%2)}")
        for i in range(12):
            m = base + i
            for e in range(4):
                r = t2 + (e % 2)
                a(f"v_dot2_f32_bf16 v{r}, v{vA + 4*m + e}, v{gbuf[i] + e}, v{r}")
    a(f"v_add_f32 v{t2}, v{t2}, v{t3}")
    a(f"v_mov_b32 v{t3}, v{t2}")
    a(f"v_permlane32_swap_b32 v{t2}, v{t3}")
    a(f"v_add_f32 v{t2}, v{t2}, v{t3}")
    a(f"v_mul_f32 v{t2}, {hx(f2u(-LOG2E))}, v{t2}")
    a(f"v_exp_f32 v{t2}, v{t2}")
    a(f"v_add_f32 v{t2}, 1.0, v{t2}")
    a(f"v_rcp_f32 v{t2}, v{t2}")
    a(f"v_and_b32 v{t0}, 31, v{vLane}")
    a(f"v_lshlrev_b32 v{t0}, 2, v{t0}")
    a(f"s_lshl_b32 s{sT}, s{sMb}, 7")
    a(f"s_add_u32 s{sT}, s{sT}, {hx(G_OFF)}")
    a(f"buffer_store_dword v{t2}, v{t0}, s[{sWS}:{sWS+3}], s{sT} offen")
    a("s_endpgm")
    a.label("m1_flags")
    a.restore(st7)
    a(f"s_cmp_lg_u32 s{sMb}, 0")
    a("s_cbranch_scc1 m1_end")
    a(f"v_lshlrev_b32 v{t0}, 7, v{vLane}")
    a(f"v_mov_b32 v{t2}, 0")
    a(f"s_mov_b32 s{sT}, {hx(F_OFF)}")
    a(f"buffer_store_dword v{t2}, v{t0}, s[{sWS}:{sWS+3}], s{sT} offen")
    a.label("m1_end")
    a("s_endpgm")
    return V.hi, f"; @launch kernel=m1_kernel grid=(256,1,1) block=(512,1,1) lds={P1_LDS}"
```

```python
import os
from asmlib import *
from gen import *
import gen

SMOD2 = os.environ.get("SMOD2", "")
SMOD2 = (" " + SMOD2) if SMOD2 else ""
K2_STAGE = 18432
K2_NS = 4
K2_VB = 36864
K2_VS = 3584
K2_LDS = 81920


def decode_k2(a, src, sXcd, sIdx, sS, sI, sJ, sT):
    a(f"s_and_b32 s{sXcd}, s{src}, 7")
    a(f"s_lshr_b32 s{sIdx}, s{src}, 3")
    a(f"s_and_b32 s{sIdx}, s{sIdx}, 31")
    a(f"s_and_b32 s{sS}, s{sXcd}, 3")
    a(f"s_lshr_b32 s{sT}, s{sXcd}, 2")
    a(f"s_lshl_b32 s{sT}, s{sT}, 3")
    a(f"s_and_b32 s{sI}, s{sIdx}, 7")
    a(f"s_add_u32 s{sI}, s{sI}, s{sT}")
    a(f"s_lshr_b32 s{sJ}, s{sIdx}, 3")


def gen_k2(a):
    L = "k2_kernel"
    a.raw(".p2align 8")
    a.raw(f".globl {L}")
    a.raw(f".type {L},@function")
    a.label(L)
    sW2, sWO, sB2, sWS = 16, 20, 24, 28
    sWv, sXcd, sIdx, sS, sI, sJ, sT, sT2, sMb = 32, 33, 34, 35, 36, 37, 38, 39, 40
    a("s_cmp_ge_u32 s2, 512")
    a("s_cbranch_scc1 k2_end")
    T = Stamps(1, base=64, n=14)
    T.start(a)
    a("s_load_dwordx2 s[4:5], s[0:1], 16")
    a("s_load_dwordx4 s[8:11], s[0:1], 48")
    a("s_load_dwordx2 s[14:15], s[0:1], 88")
    vLane, vL16 = 1, 2
    a("v_lshrrev_b32 v3, 6, v0")
    a(f"v_and_b32 v{vLane}, 63, v0")
    a(f"v_readfirstlane_b32 s{sWv}, v3")
    decode_k2(a, 2, sXcd, sIdx, sS, sI, sJ, sT)
    a(f"v_lshlrev_b32 v{vL16}, 4, v{vLane}")
    a(f"s_lshl_b32 s{sMb}, s{sI}, 2")
    a(f"s_add_u32 s{sMb}, s{sMb}, s{sWv}")
    a.waitcnt(lg=0)
    srd(a, sWS, 14, 15, gen.WS_SIZE)
    a("s_cmp_lt_u32 s2, 256" if os.environ.get("GFIRST", "1") == "1" else "s_cmp_ge_u32 s2, 256")
    a("s_cbranch_scc1 k2_gemm")
    st0 = a.save()
    hi_a = gen_attn(a, T, locals())
    a.label("k2_gemm")
    a.restore(st0)
    T.n = 1
    hi_g = gen_gemm(a, T, locals())
    a.label("k2_end")
    a("s_endpgm")
    a.label("k2_code_end")
    return max(hi_a, hi_g), f"; @launch kernel=k2_kernel grid=(512,1,1) block=(256,1,1) lds={K2_LDS}"


def gen_attn(a, T, E):
    sWS, sWv, sS, sI, sJ, sT, sT2, sMb = (E[k] for k in ("sWS", "sWv", "sS", "sI", "sJ", "sT", "sT2", "sMb"))
    vLane, vL16 = E["vLane"], E["vL16"]
    V = Regs("v", 3, 256)
    vS = V.alloc(144, 4)
    vO = V.alloc(16, 4)
    vR = V.alloc(24, 4)
    vQ = V.alloc(12, 4)
    vQm = V.alloc(8, 4)
    vM = V.alloc(8, 4)
    vKeep = V.alloc(4, 4)
    vVa = V.alloc(4, 4)
    vT = V.alloc(4, 4)
    vKa = V.alloc()
    vVoff = V.alloc()
    vHH4 = V.alloc()
    vG = V.alloc()
    vMx = [V.alloc(), V.alloc()]
    vVb = V.alloc()
    vOne = V.alloc()
    vNeg = V.alloc()
    vDum = V.alloc()
    t0, t1, t2, t3 = vT, vT + 1, vT + 2, vT + 3
    sQ0, sBk, sM0, sOff, sMask, sOst = 41, 42, 43, 44, 46, 45
    sMk = 8
    MK = 48 if not STAMP else 48
    def mk(i):
        if not STAMP:
            return 48 + 2 * i
        pool = [4, 6, 8, 10, 12, 16, 18, 20, 22, 24, 26, 48, 50, 52, 60, 62]
        return pool[i]

    a(f"s_mul_i32 s{sQ0}, s{sS}, 9")
    a(f"s_lshl_b32 s{sT}, s{sJ}, 1")
    a(f"s_add_u32 s{sQ0}, s{sQ0}, s{sT}")
    a(f"v_lshrrev_b32 v{t0}, 1, v{vLane}")
    a(f"v_and_b32 v{t1}, 1, v{vLane}")
    a(f"v_lshl_add_u32 v{t0}, v{t1}, 5, v{t0}")
    a(f"v_lshlrev_b32 v{vVoff}, 4, v{t0}")
    a(f"s_mul_i32 s{sT}, s{sMb}, 108")
    a(f"s_add_u32 s{sT}, s{sT}, s{sQ0}")
    a(f"s_lshl_b32 s{sT}, s{sT}, 10")
    a(f"s_add_u32 s{sT}, s{sT}, {hx(QKV_OFF)}")
    for u in range(3):
        a(f"buffer_load_dwordx4 {v(vQ + 4*u, 4)}, v{vL16}, s[{sWS}:{sWS+3}], s{sT} offen offset:{u*1024}")
    sB = [4, 5, 6]
    for b in range(3):
        a(f"s_mul_i32 s{sT}, s{sWv}, 3")
        a(f"s_lshl_b32 s{sT2}, s{sI}, 2")
        a(f"s_add_u32 s{sT}, s{sT}, s{sT2}")
        a(f"s_add_i32 s{sT}, s{sT}, {b - 8}")
        a(f"s_mul_i32 s{sT2}, s{sT}, 108")
        a(f"s_add_u32 s{sT2}, s{sT2}, s{sQ0}")
        a(f"s_lshl_b32 s{sT2}, s{sT2}, 10")
        a(f"s_add_u32 s{sT2}, s{sT2}, {hx(QKV_OFF + 36 * 1024)}")
        a(f"s_cmp_lt_i32 s{sT}, 0")
        a(f"s_cselect_b32 s{sB[b]}, {hx(OOB)}, s{sT2}")
    a(f"s_mul_i32 s{sM0}, s{sWv}, {3*3072}")
    for b in range(3):
        for u in range(3):
            a(f"s_add_u32 m0, s{sM0}, {b*3072 + u*1024}")
            a(f"s_add_u32 s{sT}, s{sB[b]}, {u*1024}")
            a(f"buffer_load_dwordx4 v{vL16}, s[{sWS}:{sWS+3}], s{sT} offen lds", "K")
    a(f"s_mul_i32 s{sM0}, s{sWv}, {3*K2_VS}")
    for b in range(3):
        for u in range(3):
            a(f"s_add_u32 m0, s{sM0}, {K2_VB + b*K2_VS + u*1152}")
            a(f"s_add_u32 s{sT}, s{sB[b]}, {(36 + u)*1024}")
            a(f"buffer_load_dwordx4 v{vVoff}, s[{sWS}:{sWS+3}], s{sT} offen lds", "V")
    a(f"v_and_b32 v{t0}, 31, v{vLane}")
    a(f"v_lshlrev_b32 v{t1}, 2, v{t0}")
    a(f"s_lshl_b32 s{sT}, s{sMb}, 7")
    a(f"s_add_u32 s{sT}, s{sT}, {hx(G_OFF)}")
    a(f"buffer_load_dword v{vG}, v{t1}, s[{sWS}:{sWS+3}], s{sT} offen")
    code_prefetch(a, t1, vDum, 8, 12, "all_code_end", E["sIdx"], "k2_hereA", begin="k2_kernel", lines=8)
    a(f"v_min_u32 v{t1}, 11, v{vLane}")
    a(f"v_mul_u32_u24 v{t1}, {K2_VS}, v{t1}")
    a(f"v_mov_b32 v{t2}, 0x3f803f80")
    a(f"v_mov_b32 v{t3}, 0x3f803f80")
    a(f"ds_write_b64 v{t1}, {v(t2, 2)} offset:{K2_VB + 3456}")
    a(f"v_lshrrev_b32 v{vHH4}, 5, v{vLane}")
    a(f"v_lshlrev_b32 v{vHH4}, 2, v{vHH4}")
    a(f"v_sub_u32 v{t0}, v{t0}, v{vHH4}")
    for i in range(16):
        c = 8 * (i // 4) + i % 4
        a(f"v_cmp_le_i32 s[{mk(i)}:{mk(i)+1}], {c}, v{t0}")
    a(f"v_mov_b32 v{t1}, 0xffff")
    a(f"v_mov_b32 v{t2}, 0xffff0000")
    for k in range(8):
        a(f"v_cndmask_b32 v{vM+k}, 0, v{t1}, s[{mk(2*k)}:{mk(2*k)+1}]")
        a(f"v_cndmask_b32 v{t3}, 0, v{t2}, s[{mk(2*k+1)}:{mk(2*k+1)+1}]")
        a(f"v_or_b32 v{vM+k}, v{vM+k}, v{t3}")
    a(f"s_mul_i32 s{sT}, s{sWv}, 3072")
    a(f"v_add_u32 v{vKa}, s{sT}, v{vL16}")
    a(f"v_bfe_u32 v{t0}, v{vLane}, 2, 2")
    a(f"v_add_u32 v{t0}, v{t0}, v{vHH4}")
    a(f"v_lshlrev_b32 v{vVb}, 5, v{t0}")
    a(f"v_and_b32 v{t0}, 1, v{vLane}")
    a(f"v_lshl_add_u32 v{vVb}, v{t0}, 4, v{vVb}")
    a(f"v_bfe_u32 v{t0}, v{vLane}, 1, 1")
    a(f"v_lshl_add_u32 v{vVb}, v{t0}, 3, v{vVb}")
    a(f"v_bfe_u32 v{t0}, v{vLane}, 4, 1")
    a(f"v_mul_u32_u24 v{t0}, 1152, v{t0}")
    a(f"v_add_u32 v{vVb}, v{vVb}, v{t0}")
    a(f"s_mul_i32 s{sT}, s{sWv}, {K2_VS}")
    a(f"s_add_u32 s{sT}, s{sT}, {K2_VB}")
    a(f"v_add_u32 v{vVb}, s{sT}, v{vVb}")
    a(f"s_add_u32 s{sT}, s{sT}, 3456")
    a(f"v_mov_b32 v{vOne}, s{sT}")
    a(f"s_cmp_eq_u32 s{sJ}, 3")
    a(f"s_cselect_b32 s{sT}, 0, 19")
    a(f"v_and_b32 v{t0}, 19, v{vLane}")
    a(f"v_cmp_eq_u32 s[{sMask}:{sMask+1}], s{sT}, v{t0}")
    a(f"v_mov_b32 v{vNeg}, 0xff7fffff")
    a(f"s_mul_i32 s{sOst}, s{sMb}, 36")
    a(f"s_add_u32 s{sOst}, s{sOst}, s{sQ0}")
    a(f"s_lshl_b32 s{sOst}, s{sOst}, 10")
    a(f"s_add_u32 s{sOst}, s{sOst}, {hx(O_OFF)}")
    T(a)
    a.wait_tag("K", want_lg=True)
    a("s_barrier")
    T(a)

    def S(n):
        return vS + 16 * n

    for hd in range(2):
        a.comment(f"---- head {hd}")

        order = [8, 0, 1, 2, 3, 4, 5, 6, 7]

        def kread2(i):
            n = order[i]
            return [f"ds_read_b128 {v(vR + 8*(i % 3) + 4*u, 4)}, v{vKa} offset:{n*3072 + (hd+u)*1024}" for u in range(2)]
        emit_list(a, kread2(0) + kread2(1))
        a(f"s_lshl_b32 s{sOff}, s{sJ}, 2")
        if hd:
            a(f"s_add_u32 s{sOff}, s{sOff}, 2")
        a(f"v_subrev_u32 v{t0}, s{sOff}, v{vHH4}")
        for u in range(2):
            for p in range(4):
                c0 = 16 * u + 8 * (p // 2) + 2 * (p % 2)
                tt = t1 + (p % 2)
                a(f"v_add_u32 v{tt}, {c0}, v{t0}")
                a(f"v_cmp_gt_u32 vcc, 18, v{tt}")
                a(f"v_cndmask_b32_e64 v{vQm + 4*u + p}, 0, v{vQ + 4*(hd+u) + p}, vcc")
        for tg in range(2):
            for z in range(2):
                i = 2 * tg + z
                a(f"v_add_u32 v{vVa+i}, {hd*1152 + (16*tg + 8*z)*32}, v{vVb}")
                a(f"v_cndmask_b32 v{vVa+i}, v{vVa+i}, v{vOne}, s[{sMask}:{sMask+1}]")
        a(f"v_mov_b32 v{vMx[0]}, v{vNeg}")
        a(f"v_mov_b32 v{vMx[1]}, v{vNeg}")

        def maxes(n):
            return [f"v_max3_f32 v{vMx[k % 2]}, v{S(n) + 2*k}, v{S(n) + 2*k + 1}, v{vMx[k % 2]}" for k in range(8)]
        for i in range(9):
            n = order[i]
            if i + 2 < 9:
                emit_list(a, kread2(i + 2))
            a(f"{MF32} {v(S(n), 16)}, {v(vR + 8*(i % 3), 4)}, {v(vQm, 4)}, 0")
            a(f"{MF32} {v(S(n), 16)}, {v(vR + 8*(i % 3) + 4, 4)}, {v(vQm + 4, 4)}, {v(S(n), 16)}")
        a(f"s_cmp_ge_u32 s{sMb}, 8")
        a(f"s_cbranch_scc1 k2_nofix{hd}")
        a.nop(12)
        for n in range(8):
            a(f"s_cmp_ge_u32 s{sMb}, {8 - n}")
            a(f"s_cbranch_scc1 k2_nofix{hd}")
            for i in range(16):
                a(f"v_mov_b32 v{S(n) + i}, v{vNeg}")
        a.label(f"k2_nofix{hd}")
        if hd == 0:
            a.wait_tag("V")
            a("s_barrier")
            T(a)

        def vread(n, tg, slot):
            return [f"ds_read_b64_tr_b16 {v(vR + 4*slot + 2*z, 2)}, v{vVa + 2*tg + z} offset:{n*K2_VS}" for z in range(2)]
        for i in range(16):
            a(f"v_cndmask_b32 v{S(8)+i}, v{S(0)+i}, v{S(8)+i}, s[{mk(i)}:{mk(i)+1}]")
        for n in (8, 1, 2, 3, 4, 5, 6, 7):
            emit_list(a, maxes(n))
        a(f"v_max_f32 v{t0}, v{vMx[0]}, v{vMx[1]}")
        a(f"v_mov_b32 v{t1}, v{t0}")
        seq = [(n, n) for n in range(1, 8)] + [(8, 8), (0, 0)]
        frs = [(vb, tg) for (_, vb) in seq for tg in range(2)]
        for f in range(4):
            emit_list(a, vread(frs[f][0], frs[f][1], f % 6))
        a(f"v_permlane32_swap_b32 v{t0}, v{t1}")
        a(f"v_max_f32 v{vMx[0]}, v{t0}, v{t1}")

        def soft(n):
            o = []
            for h2 in range(2):
                b = S(n) + 8 * h2
                o += [f"v_sub_f32 v{b+i}, v{b+i}, v{vMx[0]}" for i in range(8)]
                o += [f"v_exp_f32 v{b+i}, v{b+i}" for i in range(8)]
                o += [f"v_cvt_pk_bf16_f32 v{S(n) + 4*h2 + k}, v{b+2*k}, v{b+2*k+1}" for k in range(4)]
            return o

        def pv(idx):
            pb, vb = seq[idx]
            o = []
            for tg in range(2):
                f = 2 * idx + tg
                m = f"{MF32} {v(vO, 16)}, {v(vR + 4*(f % 6), 4)}, {v(S(pb) + 4*tg, 4)}, {'0' if f == 0 else v(vO, 16)}"
                nx = vread(frs[f + 4][0], frs[f + 4][1], (f + 4) % 6) if f + 4 < 18 else []
                o.append(nx + [m])
            return o
        emit_list(a, soft(1))
        for idx in range(8):
            nxt = seq[idx + 1][0]
            if nxt != 0:
                so = soft(nxt)
                if nxt == 8:
                    so += [f"v_bfi_b32 v{S(0)+k}, v{vM+k}, 0, v{S(8)+k}" for k in range(8)]
                    so += [f"v_and_b32 v{S(8)+k}, v{vM+k}, v{S(8)+k}" for k in range(8)]
                p = pv(idx)
                emit_list(a, so[:6] + p[0] + so[6:26] + p[1] + so[26:])
            else:
                p = pv(idx)
                emit_list(a, p[0] + p[1])
        p = pv(8)
        emit_list(a, p[0] + p[1])
        a(f"s_cmp_eq_u32 s{sJ}, 3")
        a(f"s_cselect_b64 vcc, -1, 0")
        a(f"v_cndmask_b32_e64 v{t0}, v{vO+12}, v{vO}, vcc")
        a(f"v_mov_b32 v{t1}, v{t0}")
        a(f"v_permlane32_swap_b32 v{t0}, v{t1}")
        a(f"v_cndmask_b32_e64 v{t0}, v{t1}, v{t0}, vcc")
        a(f"v_rcp_f32 v{t0}, v{t0}")
        a(f"v_mul_f32 v{t0}, v{t0}, v{vG}")
        for i in range(16):
            a(f"v_mul_f32 v{vO+i}, v{vO+i}, v{t0}")
        for k in range(8):
            a(f"v_cvt_pk_bf16_f32 v{vO+k}, v{vO+2*k}, v{vO+2*k+1}")
        a(f"s_lshl_b32 s{sOff}, s{sJ}, 2")
        a(f"v_mov_b32 v{t3}, {hx(OOB)}")
        if hd == 0:
            for pp in range(2):
                a(f"v_add_u32 v{t1}, {8*pp}, v{vHH4}")
                a(f"v_cmp_le_u32 vcc, s{sOff}, v{t1}")
                a(f"v_cndmask_b32_e64 v{t1+pp}, v{t3}, v{vL16}, vcc")
                a(f"buffer_store_dwordx2 {v(vO + 2*pp, 2)}, v{t1+pp}, s[{sWS}:{sWS+3}], s{sOst} offen offset:{8*pp} sc1")
            for k in range(4):
                a(f"v_mov_b32 v{vKeep+k}, v{vO+4+k}")
        else:
            for p in range(4):
                c0 = 8 * (p // 2) + 2 * (p % 2)
                a(f"v_add_u32 v{t1}, {c0 - 2}, v{vHH4}")
                a(f"v_cmp_gt_i32 vcc, s{sOff}, v{t1}")
                a(f"v_cndmask_b32_e64 v{vKeep+p}, v{vO+p}, v{vKeep+p}, vcc")
            a(f"buffer_store_dwordx4 {v(vKeep, 4)}, v{vL16}, s[{sWS}:{sWS+3}], s{sOst} offen offset:1024 sc1")
            for pp in range(2):
                a(f"v_add_u32 v{t1}, {8*pp - 4}, v{vHH4}")
                a(f"v_cmp_gt_i32 vcc, s{sOff}, v{t1}")
                a(f"v_cndmask_b32_e64 v{t1+pp}, v{t3}, v{vL16}, vcc")
                a(f"buffer_store_dwordx2 {v(vO + 4 + 2*pp, 2)}, v{t1+pp}, s[{sWS}:{sWS+3}], s{sOst} offen offset:{2048 + 8*pp} sc1")
        T(a)
    a.waitcnt(vm=0)
    a("s_barrier")
    a(f"s_cmp_lg_u32 s{sWv}, 0")
    a("s_cbranch_scc1 k2_attn_done")
    a(f"s_lshl_b32 s{sT}, s{sI}, 2")
    a(f"s_add_u32 s{sT}, s{sT}, s{sS}")
    a(f"s_lshl_b32 s{sT}, s{sT}, 7")
    a(f"s_add_u32 s{sT}, s{sT}, {hx(F_OFF)}")
    a(f"v_mov_b32 v{t0}, 1")
    a("s_mov_b64 exec, 1")
    a(f"buffer_atomic_add v{t0}, off, s[{sWS}:{sWS+3}], s{sT}")
    a("s_mov_b64 exec, -1")
    a.label("k2_attn_done")
    T.dump(a, sWS, sWv, 4, vT)
    a("s_endpgm")
    return V.hi


def gen_gemm(a, T, E):
    sW2, sWO, sB2, sWS, sWv, sS, sI, sJ, sT, sT2, sMb = (E[k] for k in ("sW2", "sWO", "sB2", "sWS", "sWv", "sS", "sI", "sJ", "sT", "sT2", "sMb"))
    vLane, vL16 = E["vLane"], E["vL16"]
    V = Regs("v", 3, 256)
    acc = V.alloc(64, 4)
    accs = V.alloc(8, 4)
    DA = 4
    vA = V.alloc(8 * DA, 4)
    RB = 6
    vB = V.alloc(4 * RB, 4)
    vSF = V.alloc(8, 4)
    vZ = V.alloc(4, 4)
    vb2 = V.alloc(36, 4)
    vT = V.alloc(4, 4)
    vRd = [V.alloc(), V.alloc()]
    vSRd = [V.alloc(), V.alloc()]
    vOffM = V.alloc()
    vOffS = V.alloc()
    vF = [V.alloc(), V.alloc(), V.alloc()]
    vPoll = V.alloc()
    vSSt = V.alloc()
    t0, t1, t2, t3 = vT, vT + 1, vT + 2, vT + 3
    sDM, sDS, sMm, sMs, sAo, sFl, sPo, sDMo, sDSo = 41, 42, 43, 44, 45, 46, 47, 48, 49

    srd(a, sW2, 8, 9, 4608 * 1152)
    srd(a, sWO, 4, 5, 576 * 1152)
    srd(a, sB2, 10, 11, 576 * 2)
    a(f"v_bfe_u32 v{t0}, v{vLane}, 2, 2")
    a(f"v_lshrrev_b32 v{t1}, 4, v{vLane}")
    a(f"v_and_b32 v{t2}, 3, v{vLane}")
    a(f"v_mul_u32_u24 v{vOffM}, 1152, v{t0}")
    a(f"v_lshl_add_u32 v{vOffM}, v{t1}, 6, v{vOffM}")
    a(f"v_lshl_add_u32 v{vOffM}, v{t2}, 4, v{vOffM}")
    a(f"v_lshrrev_b32 v{t3}, 1, v{vLane}")
    a(f"v_mul_u32_u24 v{vOffS}, 1152, v{t3}")
    a(f"v_and_b32 v{t3}, 1, v{vLane}")
    a(f"v_lshl_add_u32 v{vOffS}, v{t3}, 4, v{vOffS}")
    a(f"s_mul_i32 s{sT}, s{sWv}, {16*1152}")
    a(f"s_lshl_b32 s{sT2}, s{sJ}, 8")
    a(f"s_add_u32 s{sDMo}, s{sT}, s{sT2}")
    a(f"s_lshl_b32 s{sT2}, s{sJ}, 5")
    a(f"s_add_u32 s{sDSo}, s{sT}, s{sT2}")
    a(f"s_add_u32 s{sDSo}, s{sDSo}, 1024")
    a(f"s_mul_i32 s{sT}, s{sS}, {1152*1152}")
    a(f"s_add_u32 s{sDM}, s{sDMo}, s{sT}")
    a(f"s_add_u32 s{sDS}, s{sDSo}, s{sT}")
    a(f"s_mul_i32 s{sT}, s{sS}, {144*1152}")
    a(f"s_add_u32 s{sDMo}, s{sDMo}, s{sT}")
    a(f"s_add_u32 s{sDSo}, s{sDSo}, s{sT}")
    a(f"s_lshl_b32 s{sMm}, s{sWv}, 12")
    a(f"s_lshl_b32 s{sMs}, s{sWv}, 9")
    a(f"s_mul_i32 s{sAo}, s{sMb}, 288")
    a(f"s_mul_i32 s{sT}, s{sS}, 72")
    a(f"s_add_u32 s{sAo}, s{sAo}, s{sT}")
    a(f"s_lshl_b32 s{sAo}, s{sAo}, 10")

    NQ = 21

    def dma(q):
        out = []
        if q >= NQ:
            return out
        wo = q >= 18
        sr = sWO if wo else sW2
        bm, bs = (sDMo, sDSo) if wo else (sDM, sDS)
        row0 = (q - 18 if wo else q) * 64
        slot = (q % K2_NS) * K2_STAGE
        for rq in range(4):
            out += [f"s_add_u32 m0, s{sMm}, {slot + rq*1024}",
                    f"s_add_u32 s{sT}, s{bm}, {(row0 + 4*rq) * 1152}",
                    (f"buffer_load_dwordx4 v{vOffM}, s[{sr}:{sr+3}], s{sT} offen lds", f"D{q}")]
        out += [f"s_add_u32 m0, s{sMs}, {slot + 16384}",
                f"s_add_u32 s{sT}, s{bs}, {row0 * 1152}",
                "s_mov_b32 exec_hi, 0",
                (f"buffer_load_dwordx4 v{vOffS}, s[{sr}:{sr+3}], s{sT} offen lds", f"D{q}"),
                "s_mov_b32 exec_hi, -1"]
        return out

    NT = 41

    def aload(t):
        out = []
        if t >= NT:
            return out
        if t == 36:
            out += [f"s_mul_i32 s{sAo}, s{sMb}, 36",
                    f"s_mul_i32 s{sT2}, s{sS}, 9",
                    f"s_add_u32 s{sAo}, s{sAo}, s{sT2}",
                    f"s_lshl_b32 s{sAo}, s{sAo}, 10",
                    f"s_add_u32 s{sAo}, s{sAo}, {hx(O_OFF)}"]
        for kq in range(2):
            if t == 40 and kq == 1:
                continue
            out.append(f"buffer_load_dwordx4 {v(vA + 8*(t % DA) + 4*kq, 4)}, v{vL16}, s[{sWS}:{sWS+3}], s{sAo} offen offset:{((t % 2)*2 + kq)*1024}" + (" sc1" if t >= 36 else ""))
        if t % 2 == 1:
            out.append(f"s_add_u32 s{sAo}, s{sAo}, 4096")
        return out

    emit_list(a, aload(0) + dma(0))
    a(f"s_cmp_eq_u32 s{sS}, 0")
    a(f"s_cselect_b32 s{sT2}, 0, {hx(OOB)}")
    a(f"s_lshl_b32 s{sT}, s{sJ}, 8")
    a(f"s_add_u32 s{sT}, s{sT}, s{sT2}")
    a(f"v_lshrrev_b32 v{t3}, 5, v{vLane}")
    a(f"v_and_b32 v{vSSt}, 31, v{vLane}")
    a(f"v_lshlrev_b32 v{vSSt}, 1, v{vSSt}")
    for cb in range(4):
        a(f"buffer_load_ushort v{vb2 + 4*cb}, v{vSSt}, s[{sB2}:{sB2+3}], s{sT} offen offset:{64*cb}")
    a(f"s_lshl_b32 s{sT}, s{sJ}, 5")
    a(f"s_add_u32 s{sT}, s{sT}, s{sT2}")
    a(f"v_and_b32 v{vPoll}, 30, v{vSSt}")
    a(f"buffer_load_ushort v{vb2 + 16}, v{vPoll}, s[{sB2}:{sB2+3}], s{sT} offen offset:1024")
    a(f"s_lshl_b32 s{sT}, s{sMb}, 7")
    a(f"s_add_u32 s{sT}, s{sT}, {hx(G_OFF)}")
    a(f"v_and_b32 v{vZ}, 31, v{vLane}")
    a(f"v_lshlrev_b32 v{vZ}, 2, v{vZ}")
    a(f"buffer_load_dword v{vF[0]}, v{vZ}, s[{sWS}:{sWS+3}], s{sT} offen")
    a(f"v_and_b32 v{vZ+1}, 15, v{vLane}")
    a(f"v_lshlrev_b32 v{vZ+1}, 2, v{vZ+1}")
    a(f"buffer_load_dword v{vF[1]}, v{vZ+1}, s[{sWS}:{sWS+3}], s{sT} offen")
    a(f"buffer_load_dword v{vF[2]}, v{vZ+1}, s[{sWS}:{sWS+3}], s{sT} offen offset:64")
    emit_list(a, aload(1) + dma(1) + aload(2) + aload(3) + dma(2))
    a(f"v_lshlrev_b32 v{vRd[0]}, 6, v{t0}")
    a(f"v_lshl_add_u32 v{vRd[0]}, v{t2}, 3, v{vRd[0]}")
    a(f"v_lshl_add_u32 v{vRd[0]}, v{t3}, 10, v{vRd[0]}")
    a(f"v_and_b32 v{vZ+2}, 1, v{t1}")
    a(f"v_lshl_add_u32 v{vRd[0]}, v{vZ+2}, 5, v{vRd[0]}")
    a(f"v_add_u32 v{vRd[1]}, {2*K2_STAGE}, v{vRd[0]}")
    a(f"v_lshlrev_b32 v{vSRd[0]}, 9, v{vZ+2}")
    a(f"v_lshl_add_u32 v{vSRd[0]}, v{t3}, 7, v{vSRd[0]}")
    a(f"v_lshl_add_u32 v{vSRd[0]}, v{t0}, 5, v{vSRd[0]}")
    a(f"v_lshl_add_u32 v{vSRd[0]}, v{t2}, 3, v{vSRd[0]}")
    a(f"v_add_u32 v{vSRd[1]}, {2*K2_STAGE}, v{vSRd[0]}")
    a(f"v_lshlrev_b32 v{vSSt}, 2, v{vZ+1}")
    a(f"v_lshl_add_u32 v{vSSt}, v{vZ+2}, 9, v{vSSt}")
    a(f"v_lshl_add_u32 v{vSSt}, v{t3}, 3, v{vSSt}")
    a(f"s_lshl_b32 s{sFl}, s{sI}, 2")
    a(f"s_add_u32 s{sFl}, s{sFl}, s{sS}")
    a(f"s_lshl_b32 s{sFl}, s{sFl}, 7")
    a(f"s_add_u32 s{sFl}, s{sFl}, {hx(F_OFF)}")
    a(f"s_lshl_b32 s{sPo}, s{sS}, 6")
    a(f"s_add_u32 s{sPo}, s{sPo}, s{sMb}")
    a(f"s_mul_i32 s{sPo}, s{sPo}, 36")
    a(f"s_lshl_b32 s{sPo}, s{sPo}, 10")
    a(f"s_add_u32 s{sPo}, s{sPo}, {hx(P_OFF)}")
    for i in range(4):
        a(f"v_mov_b32 v{vZ+i}, 0")
    for cb in range(5):
        for i in range(1, 4):
            a(f"v_mov_b32 v{vb2 + 4*cb + i}, 0")
    for i in range(1, 4):
        a(f"v_mov_b32 v{vb2 + 20 + i}, 0")
        a(f"v_mov_b32 v{vb2 + 24 + i}, 0")
    a(f"v_mov_b32 v{t0}, 0x3f80")
    a(f"v_cmp_gt_u32 vcc, 32, v{vLane}")
    a(f"v_cndmask_b32_e64 v{vb2 + 20}, 0, v{t0}, vcc")
    a(f"v_cmp_gt_u32 vcc, 16, v{vLane}")
    a(f"v_cndmask_b32_e64 v{vb2 + 24}, 0, v{t0}, vcc")
    for cb in range(4):
        a(f"{MF32} {v(acc + 16*cb, 16)}, {v(vb2 + 4*cb, 4)}, {v(vb2 + 20, 4)}, 0")
    for h2 in range(2):
        a(f"{MF16} {v(accs + 4*h2, 4)}, {v(vb2 + 16, 4)}, {v(vb2 + 24, 4)}, 0")
    for i in range(3):
        a(f"v_sub_f32 v{vF[i]}, 1.0, v{vF[i]}")
    T(a)
    a.wait_tag("D0")
    a("s_barrier")
    T(a)

    frs = []
    for t in range(NT):
        for kq in range(2):
            if t == 40 and kq == 1:
                continue
            for cb in range(4):
                frs.append((t, kq, cb))

    def bread(f):
        if f >= len(frs):
            return []
        t, kq, cb = frs[f]
        q = t // 2
        sl = q % K2_NS
        o = (sl % 2) * K2_STAGE + ((t % 2) * 2 + kq) * 4096 + cb * 256
        return [f"ds_read_b64_tr_b16 {v(vB + 4*(f % RB) + 2*z, 2)}, v{vRd[sl // 2]} offset:{o + 2048*z}" for z in range(2)]

    def sread(t):
        if t >= NT:
            return []
        q = t // 2
        sl = q % K2_NS
        o = (sl % 2) * K2_STAGE + 16384 + (t % 2) * 1024
        return [f"ds_read_b64_tr_b16 {v(vSF + 4*(t % 2) + 2*z, 2)}, v{vSRd[sl // 2]} offset:{o + 256*z}" for z in range(2)]

    for f in range(RB - 1):
        emit_list(a, bread(f))
    emit_list(a, sread(0))
    pend = []
    f = 0
    for t in range(NT):
        q = t // 2
        ex = []
        if t % 2 == 0:
            ex = dma(q + 3)
        if t == 22:
            a(f"buffer_load_dword v{vPoll}, off, s[{sWS}:{sWS+3}], s{sFl} sc1")
        if t == 36:
            T(a)
            for e in pend:
                emit_list(a, e)
            pend = []
            for i in range(64):
                a(f"v_mul_f32 v{acc+i}, v{acc+i}, v{vF[0]}")
            for h2 in range(2):
                for i in range(4):
                    a(f"v_mul_f32 v{accs+4*h2+i}, v{accs+4*h2+i}, v{vF[1+h2]}")
        slot = vA + 8 * (t % DA)
        n8 = 4 if t == 40 else 8
        for i in range(n8):
            _, kq, cb = frs[f]
            emit_list(a, bread(f + RB - 1))
            a(f"{MF32} {v(acc + 16*cb, 16)}, {v(vB + 4*(f % RB), 4)}, {v(slot + 4*kq, 4)}, {v(acc + 16*cb, 16)}")
            f += 1
            if i == 1 and pend:
                emit_list(a, pend.pop(0))
            if i == 2 and pend:
                emit_list(a, pend.pop(0))
            if i == 3:
                emit_list(a, sread(t + 1))
            if i >= 3 and ex:
                k = 3 if len(ex) > 5 else 5
                emit_list(a, ex[:k])
                ex = ex[k:]
        emit_list(a, ex)
        f1 = vZ if t == 40 else slot + 4
        for i in range(4):
            a(f"v_permlane16_swap_b32 v{slot+i}, v{f1+i}")
        nl = aload(t + DA)
        if t + DA == 36:
            def poll(a):
                a(f"v_readfirstlane_b32 s{sT2}, v{vPoll}")
                a(f"s_cmp_ge_u32 s{sT2}, 4")
                a("s_cbranch_scc1 k2_ready")
                a.raw("    s_mov_b32 s53, 0x20000")
                a.label("k2_spin")
                a.raw("    s_sub_u32 s53, s53, 1")
                a.raw("    s_cbranch_scc1 k2_ready")
                a.raw("    s_sleep 2")
                a.raw(f"    buffer_load_dword v{vPoll}, off, s[{sWS}:{sWS+3}], s{sFl} sc1")
                a.raw("    s_waitcnt vmcnt(0)")
                a.raw(f"    v_readfirstlane_b32 s{sT2}, v{vPoll}")
                a.raw("    s_nop 3")
                a.raw(f"    s_cmp_lt_u32 s{sT2}, 4")
                a.raw("    s_cbranch_scc1 k2_spin")
                a.label("k2_ready")
            nl = [poll] + nl
        pend = [[f"{MF16} {v(accs, 4)}, {v(vSF + 4*(t % 2), 4)}, {v(slot, 4)}, {v(accs, 4)}"],
                [f"{MF16} {v(accs + 4, 4)}, {v(vSF + 4*(t % 2), 4)}, {v(f1, 4)}, {v(accs + 4, 4)}"] + nl]
        if t == 0:
            a.wait_tag("D1")
            a("s_barrier")
        if t % 2 == 1 and t < NT - 1:
            a.wait_tag(f"D{q+2}")
            a("s_barrier")
            if q in (5, 11):
                T(a)
    for e in pend:
        emit_list(a, e)
    T(a)
    a(f"s_lshl_b32 s{sT}, s{sJ}, 13")
    a(f"s_add_u32 s{sT}, s{sT}, s{sPo}")
    for cb in range(4):
        for u in range(2):
            b = acc + 16 * cb + 8 * u
            for k in range(4):
                a(f"v_cvt_pk_bf16_f32 v{b+k}, v{b+2*k}, v{b+2*k+1}")
            if cb == 2 and u == 0:
                a(f"s_add_u32 s{sT}, s{sT}, 4096")
            a(f"buffer_store_dwordx4 {v(b, 4)}, v{vL16}, s[{sWS}:{sWS+3}], s{sT} offen offset:{((cb % 2)*2 + u)*1024}{SMOD2}")
    a(f"s_lshl_b32 s{sT}, s{sJ}, 10")
    a(f"s_add_u32 s{sT}, s{sT}, s{sPo}")
    a(f"s_add_u32 s{sT}, s{sT}, {32*1024}")
    for h2 in range(2):
        b = accs + 4 * h2
        for k in range(2):
            a(f"v_cvt_pk_bf16_f32 v{b+k}, v{b+2*k}, v{b+2*k+1}")
        a(f"buffer_store_dwordx2 {v(b, 2)}, v{vSSt}, s[{sWS}:{sWS+3}], s{sT} offen offset:{256*h2}{SMOD2}")
    T.dump(a, sWS, sWv, 4, vT)
    a("s_endpgm")
    return V.hi


def gen_k3(a):
    L = "k3_kernel"
    a.raw(".p2align 8")
    a.raw(f".globl {L}")
    a.raw(f".type {L},@function")
    a.label(L)
    NWG = 576
    sO, sWS = 16, 20
    a(f"s_cmp_ge_u32 s2, {NWG}")
    a("s_cbranch_scc1 k3_end")
    T = Stamps(2)
    T.start(a)
    a("s_load_dwordx2 s[4:5], s[0:1], 72")
    a("s_load_dwordx2 s[6:7], s[0:1], 88")
    a("v_lshrrev_b32 v3, 6, v0")
    a("v_and_b32 v1, 63, v0")
    a("v_readfirstlane_b32 s24, v3")
    a("v_lshlrev_b32 v2, 4, v1")
    a("s_lshl_b32 s25, s2, 2")
    a("s_add_u32 s25, s25, s24")
    a(f"s_mul_hi_u32 s26, s25, {hx((1 << 32) // 36 + 1)}")
    a("s_mul_i32 s27, s26, 36")
    a("s_sub_u32 s27, s25, s27")
    a("s_lshl_b32 s28, s25, 10")
    a(f"s_add_u32 s28, s28, {hx(P_OFF)}")
    a("v_and_b32 v4, 31, v1")
    a("v_mul_u32_u24 v4, 1152, v4")
    a("v_lshrrev_b32 v5, 5, v1")
    a("v_lshl_add_u32 v4, v5, 4, v4")
    a(f"s_mul_i32 s29, s26, {32*1152}")
    a("s_lshl_b32 s30, s27, 5")
    a("s_add_u32 s29, s29, s30")
    a.waitcnt(lg=0)
    srd(a, sWS, 6, 7, gen.WS_SIZE)
    srd(a, sO, 4, 5, 2048 * 1152)
    for sp in range(4):
        a(f"buffer_load_dwordx4 {v(8 + 4*sp, 4)}, v2, s[{sWS}:{sWS+3}], s28 offen")
        if sp < 3:
            a(f"s_add_u32 s28, s28, {64*36*1024}")
    for sp in range(4):
        for k in range(4):
            src = 8 + 4 * sp + k
            lo, hi = 24 + 2 * k, 25 + 2 * k
            if sp == 0:
                a(f"v_lshlrev_b32 v{lo}, 16, v{src}")
                a(f"v_and_b32 v{hi}, 0xffff0000, v{src}")
            else:
                a(f"v_lshlrev_b32 v6, 16, v{src}")
                a(f"v_and_b32 v7, 0xffff0000, v{src}")
                a(f"v_add_f32 v{lo}, v{lo}, v6")
                a(f"v_add_f32 v{hi}, v{hi}, v7")
    for k in range(4):
        a(f"v_cvt_pk_bf16_f32 v{8+k}, v{24+2*k}, v{25+2*k}")
    a("v_permlane32_swap_b32 v8, v10")
    a("v_permlane32_swap_b32 v9, v11")
    a(f"buffer_store_dwordx4 v[8:11], v4, s[{sO}:{sO+3}], s29 offen")
    T.dump(a, sWS, 24, 4, 12)
    a.label("k3_end")
    a("s_endpgm")
    return 32, f"; @launch kernel=k3_kernel grid=({NWG},1,1) block=(256,1,1) lds=0"
```

```python
import sys, struct, math
sys.path.insert(0, "dev")
from asmlib import *

NAME = "gated_mix__sliding_block__mixer_channel_mlp__prompt"

H_OFF = 0
QKV_OFF = 0x1200000
O_OFF = 0x18C0000
P_OFF = 0x1B00000
G_OFF = 0x2400000
F_OFF = 0x2410000
WS_SIZE = 0x2420000
OOB = 0x40000000


def f2u(x):
    return struct.unpack("<I", struct.pack("<f", x))[0]


def hx(x):
    return f"0x{x & 0xffffffff:x}"


LOG2E = 1.4426950408889634
GC1 = -2.0 * math.sqrt(2.0 / math.pi) * LOG2E
GC2 = GC1 * 0.044715
QSCALE = LOG2E / math.sqrt(18.0)

import os
STAMP = bool(os.environ.get("STAMP"))
T_OFF = 0x2500000
if STAMP:
    WS_SIZE = 0x2800000


class Stamps:
    def __init__(self, kidx, base=60, n=18):
        self.n = 0
        self.kidx = kidx
        self.base = base
        self.max = n

    def start(self, a):
        if not STAMP:
            return
        a("s_memrealtime s[56:57]")
        self.n = 0
        self(a)

    def __call__(self, a):
        if not STAMP:
            return
        assert self.n < self.max
        a(f"s_memtime s[{self.base+2*self.n}:{self.base+1+2*self.n}]")
        self.n += 1

    def dump(self, a, sWS, sWv, nw, vt):
        if not STAMP:
            return
        self(a)
        a("s_memrealtime s[58:59]")
        a.waitcnt(lg=0)
        a(f"s_mul_i32 s54, s2, {nw}")
        a(f"s_add_u32 s54, s54, s{sWv}")
        a(f"s_lshl_b32 s54, s54, 7")
        a(f"s_add_u32 s54, s54, {hx(T_OFF + self.kidx * 0x80000)}")
        a(f"v_mov_b32 v{vt}, 0")
        vals = ["s56", "s58", str(self.n)] + [f"s{self.base+2*i}" for i in range(self.n)]
        for i, x in enumerate(vals):
            a(f"v_mov_b32 v{vt+1}, {x}")
            a(f"buffer_store_dword v{vt+1}, v{vt}, s[{sWS}:{sWS+3}], s54 offen offset:{4*i}")


MF32 = "v_mfma_f32_32x32x16_bf16"
MF16 = "v_mfma_f32_16x16x32_bf16"


def srd(a, d, lo, hi, size):
    a(f"s_mov_b32 s{d}, s{lo}")
    a(f"s_and_b32 s{d+1}, s{hi}, 0xffff")
    a(f"s_mov_b32 s{d+2}, {hx(size)}")
    a(f"s_mov_b32 s{d+3}, 0x20000")


def kernel_desc(label, nv, ns=100):
    nv = (nv + 7) // 8 * 8
    return f""".section .rodata,"a"
.p2align 6
.amdhsa_kernel {label}
  .amdhsa_next_free_vgpr {nv}
  .amdhsa_next_free_sgpr {ns}
  .amdhsa_accum_offset {min(256, (nv + 3) // 4 * 4)}
  .amdhsa_group_segment_fixed_size 0
  .amdhsa_kernarg_size 96
  .amdhsa_user_sgpr_count 2
  .amdhsa_user_sgpr_kernarg_segment_ptr 1
  .amdhsa_system_sgpr_workgroup_id_x 1
.end_amdhsa_kernel
"""


def code_prefetch(a, vtmp, vdst, spc, slim, endlabel, sidx, here, begin, lines=16):
    if os.environ.get("NOCPF"):
        return
    a(f"s_getpc_b64 s[{spc}:{spc+1}]")
    a.label(here)
    a(f"s_sub_u32 s{spc}, s{spc}, {here}-{begin}")
    a(f"s_subb_u32 s{spc+1}, s{spc+1}, 0")
    a(f"s_mul_i32 s{slim}, s{sidx}, {lines*128}")
    a(f"v_lshlrev_b32 v{vtmp}, 7, v0")
    a(f"v_add_u32 v{vtmp}, s{slim}, v{vtmp}")
    a(f"s_mov_b32 s{slim}, {endlabel}-{begin}-4")
    a(f"v_min_u32 v{vtmp}, s{slim}, v{vtmp}")
    a(f"v_cmp_gt_u32 vcc, {lines}, v0")
    a(f"s_and_saveexec_b64 s[{slim+0 if False else spc+2}:{spc+3}], vcc")
    a(f"s_cbranch_execz {here}_skip")
    a.raw(f"    global_load_dword v{vdst}, v{vtmp}, s[{spc}:{spc+1}]")
    a.label(here + "_skip")
    a(f"s_mov_b64 exec, s[{spc+2}:{spc+3}]")


K1_STAGE = 73728
K1_AR = K1_STAGE + 8192
K1_CS = 159744
K1_LDS = K1_CS + 4096
SCHEME = os.environ.get("SCHEME", "pp")
SMOD = os.environ.get("SMOD", "")
SMOD = (" " + SMOD) if SMOD else ""
WBL = os.environ.get("WBL", "")


def gen_k1(a):
    L = "k1_kernel"
    a.raw(".p2align 8")
    a.raw(f".globl {L}")
    a.raw(f".type {L},@function")
    a.label(L)
    V = Regs("v", 1, 256)
    vA = V.alloc(144, 4)
    acc = [V.alloc(16, 4), V.alloc(16, 4)]
    RB = int(os.environ.get("RB", "6"))
    vB = V.alloc(4 * RB, 4)
    vCsF = [V.alloc(4, 4), V.alloc(4, 4)]
    vCsAcc = V.alloc(4, 4)
    vSel = V.alloc(4, 4)
    vCs = [V.alloc(4, 4), V.alloc(4, 4)]
    vB1 = [V.alloc(4, 4), V.alloc(4, 4)]
    vT = V.alloc(4, 4)
    vRd = [[V.alloc(), V.alloc()], [V.alloc(), V.alloc()]]
    vOffB = V.alloc()
    vCsRd = V.alloc()
    vE = V.alloc()
    vSt = V.alloc()
    vCsA = V.alloc()
    vRstd = V.alloc()
    vNrm = V.alloc()
    vC2 = V.alloc()
    vLane = V.alloc()
    vDum = V.alloc()
    vS = [vCs[1], vCs[1] + 1]
    vSS = [vCs[1] + 2, vCs[1] + 3]
    vARd = vB1[0]
    vOffA = [vB1[1], vB1[1] + 1]
    sX, sW, sB, sWS = 16, 20, 24, 28
    sWv, sA0, sAM, sDW, sM, sSt, sT, sT2, sOnes, sScale, sFb, sQc = 32, 33, 34, 35, 36, 37, 38, 39, 40, 41, 42, 43
    sXcd, sIdx, sS, sMt, sCl, sMb, sOwn = 44, 45, 46, 47, 48, 49, 53

    a("s_cmp_ge_u32 s2, 256")
    a("s_cbranch_scc1 k1_end")
    T = Stamps(0)
    T.start(a)
    a("s_load_dwordx4 s[4:7], s[0:1], 0")
    a("s_load_dwordx4 s[8:11], s[0:1], 32")
    a("s_load_dwordx2 s[12:13], s[0:1], 64")
    a("s_load_dwordx2 s[14:15], s[0:1], 88")
    t0, t1, t2, t3 = vT, vT + 1, vT + 2, vT + 3
    a(f"v_lshrrev_b32 v{vT}, 6, v0")
    a(f"v_and_b32 v{vLane}, 63, v0")
    a(f"v_readfirstlane_b32 s{sWv}, v{vT}")
    a(f"s_and_b32 s{sXcd}, s2, 7")
    a(f"s_lshr_b32 s{sIdx}, s2, 3")
    a(f"s_and_b32 s{sS}, s{sXcd}, 3")
    a(f"s_lshr_b32 s{sT}, s{sXcd}, 2")
    a(f"s_lshl_b32 s{sT}, s{sT}, 2")
    a(f"s_and_b32 s{sMt}, s{sIdx}, 3")
    a(f"s_add_u32 s{sMt}, s{sMt}, s{sT}")
    a(f"s_lshr_b32 s{sCl}, s{sIdx}, 2")
    a(f"v_lshrrev_b32 v{t0}, 3, v{vLane}")
    a(f"v_and_b32 v{t1}, 7, v{vLane}")
    a(f"v_lshrrev_b32 v{t2}, 1, v{t0}")
    a(f"v_xor_b32 v{t1}, v{t1}, v{t2}")
    a(f"v_mul_u32_u24 v{t0}, 1152, v{t0}")
    a(f"v_lshl_add_u32 v{vOffA[0]}, v{t1}, 4, v{t0}")
    a(f"v_xor_b32 v{vOffA[1]}, 64, v{vOffA[0]}")
    a(f"s_lshl_b32 s{sMb}, s{sMt}, 3")
    a(f"s_add_u32 s{sMb}, s{sMb}, s{sWv}")
    a(f"s_mul_i32 s{sA0}, s{sMb}, {32*1152}")
    a(f"s_lshl_b32 s{sAM}, s{sWv}, 13")
    a(f"s_add_u32 s{sAM}, s{sAM}, {K1_AR}")
    a(f"s_lshl_b32 s{sM}, s{sWv}, 10")
    a(f"s_mov_b32 s{sOnes}, 0x3f803f80")
    a.waitcnt(lg=0)
    srd(a, sX, 4, 5, 2048 * 1152)

    def a_dma(n):
        out = []
        for o in range(4):
            out += [f"s_add_u32 m0, s{sAM}, {(n % 2) * 4096 + o * 1024}",
                    f"s_add_u32 s{sT2}, s{sA0}, {o * 8 * 1152 + n * 128}",
                    (f"buffer_load_dwordx4 v{vOffA[o % 2]}, s[{sX}:{sX+3}], s{sT2} offen lds", f"A{n}")]
        return out

    PF = os.environ.get("PF") is not None
    if PF:
        a(f"s_lshr_b32 s{sT}, s{sXcd}, 2")
        a(f"s_mul_i32 s{sT}, s{sT}, {1024*1152}")
        a(f"s_mul_i32 s{sT2}, s{sIdx}, {288*128}")
        a(f"s_add_u32 s{sT}, s{sT}, s{sT2}")
        a(f"v_subrev_u32 v{t0}, 192, v0")
        a(f"v_cmp_gt_u32 s[50:51], 288, v{t0}") if False else None
        a(f"s_movk_i32 s52, 288")
        a(f"v_cmp_gt_u32 s[50:51], s52, v{t0}")
        a(f"v_lshlrev_b32 v{t0}, 7, v{t0}")
        a(f"v_mov_b32 v{t1}, {hx(OOB)}")
        a(f"v_cndmask_b32 v{t0}, v{t1}, v{t0}, s[50:51]")
        a(f"buffer_load_dword v{vSel}, v{t0}, s[{sX}:{sX+3}], s{sT} offen")
    emit_list(a, a_dma(0) + a_dma(1))

    def w_prefetch(pitch, colbase_s, nlines):
        if not PF:
            return
        a(f"s_and_b32 s{sT}, s{sMt}, 3")
        a(f"s_mul_i32 s{sT}, s{sT}, {144*pitch}")
        a(f"s_add_u32 s{sT}, s{sT}, s{colbase_s}")
        a(f"s_movk_i32 s52, 144")
        a(f"v_cmp_gt_u32 s[50:51], s52, v0")
        a(f"v_mul_u32_u24 v{t2}, {pitch}, v0")
        a(f"v_mov_b32 v{t1}, {hx(OOB)}")
        a(f"v_cndmask_b32 v{t2}, v{t1}, v{t2}, s[50:51]")
        for i in range(nlines):
            a(f"buffer_load_dword v{vSel+1+(i%3)}, v{t2}, s[{sW}:{sW+3}], s{sT} offen offset:{128*i}")
    a(f"v_lshrrev_b32 v{vE}, 5, v{vLane}")
    a(f"v_bfe_u32 v{t0}, v{vLane}, 2, 2")
    a(f"v_and_b32 v{t3}, 3, v{vLane}")
    a(f"v_bfe_u32 v{t2}, v{vLane}, 4, 1")
    a(f"v_lshlrev_b32 v{vCsRd}, 6, v{t0}")
    a(f"v_lshl_add_u32 v{vCsRd}, v{t3}, 3, v{vCsRd}")
    a(f"v_lshl_add_u32 v{vRd[0][0]}, v{t2}, 5, v{vCsRd}")
    a(f"v_lshl_add_u32 v{vRd[0][0]}, v{vE}, 11, v{vRd[0][0]}")
    a(f"v_lshl_add_u32 v{t0}, v{vE}, 2, v{t0}")
    a(f"v_lshlrev_b32 v{vOffB}, 6, v{t2}")
    a(f"v_lshl_add_u32 v{vOffB}, v{t3}, 4, v{vOffB}")
    a(f"s_cmp_ge_u32 s{sCl}, 6")
    a("s_cbranch_scc1 k1_qkv")
    st_branch = a.save()

    def common_late():
        code_prefetch(a, t0, vDum, 8, 12, "all_code_end", sIdx, "k1_here%d" % len(a.out), begin="k1_kernel", lines=20)
        srd(a, sWS, 14, 15, WS_SIZE)
        a(f"v_and_b32 v{t0}, 31, v{vLane}")
        a(f"v_bfe_u32 v{t1}, v{t0}, 1, 3")
        a(f"v_lshlrev_b32 v{t2}, 1, v{vE}")
        a(f"v_xor_b32 v{t1}, v{t1}, v{t2}")
        a(f"v_lshlrev_b32 v{t1}, 4, v{t1}")
        a(f"v_lshl_add_u32 v{t1}, v{t0}, 7, v{t1}")
        a(f"v_add_u32 v{vARd}, s{sAM}, v{t1}")
        a(f"v_xor_b32 v{vARd+1}, 16, v{vARd}")
        a(f"v_xor_b32 v{vARd+2}, 64, v{vARd}")
        a(f"v_xor_b32 v{vARd+3}, 80, v{vARd}")
        a(f"v_add_u32 v{vRd[0][1]}, 36864, v{vRd[0][0]}")
        a(f"v_add_u32 v{vRd[1][0]}, {K1_STAGE}, v{vRd[0][0]}")
        a(f"v_add_u32 v{vRd[1][1]}, {K1_STAGE + 36864}, v{vRd[0][0]}")
        a(f"v_lshlrev_b32 v{vSt}, 4, v{vLane}")

    def a_reads(n):
        return [f"ds_read_b128 {v(vA + 16*n + 4*i, 4)}, v{vARd + i} offset:{(n % 2) * 4096}" for i in range(4)]

    def dma(p, n, pitch):
        return [f"s_add_u32 m0, s{sM}, {(p % 2) * K1_STAGE + n * 8192}",
                f"s_add_u32 s{sT}, s{sDW}, {p * 128 + n * 64 * pitch}",
                (f"buffer_load_dwordx4 v{vOffB}, s[{sW}:{sW+3}], s{sT} offen lds", f"D{p}")]

    def dma_own1(pitch, half):
        out = []
        for i in range(4 * half, 4 * half + 4):
            out += [f"s_add_u32 m0, s{sAM}, {i * 1024}",
                    f"s_add_u32 s{sT}, s{sOwn}, {i * 8 * pitch}",
                    (f"buffer_load_dwordx4 v{vOffB}, s[{sW}:{sW+3}], s{sT} offen lds", "D1")]
        return out

    def own_setup(pitch):
        a(f"s_mul_i32 s{sOwn}, s{sWv}, {56 * pitch}")
        a(f"s_add_u32 s{sOwn}, s{sOwn}, s{sDW}")
        a(f"s_add_u32 s{sOwn}, s{sOwn}, {64 * pitch + 128}")

    def dma_stage(p, pitch):
        return sum((dma(p, n, pitch) for n in range(9)), [])

    def b_reads(j, m, slot, base=None):
        if base is None:
            base = vB
        p, blk = j // 2, j % 2
        t, vv = m // 2, m % 2
        o = (4 * t + vv) * 1024 + blk * 256
        hi = 1 if o >= 36864 else 0
        o -= hi * 36864
        return [f"ds_read_b64_tr_b16 {v(base + 4*slot + 2*z, 2)}, v{vRd[p % 2][hi]} offset:{o + 512*z}" for z in range(2)]

    def mfma(j, m, slot, ac, base=None):
        if base is None:
            base = vB
        return f"{MF32} {v(ac, 16)}, {v(base + 4*slot, 4)}, {v(vA + 4*m, 4)}, {'0' if m == 0 else v(ac, 16)}"

    def first_reads(j):
        return sum((b_reads(j, f, f % RB) for f in range(RB - 1)), [])

    def block_main(j, ac, nxt=None):
        out = []
        for m in range(36):
            f = m + RB - 1
            if f < 36:
                out += b_reads(j, f, f % RB)
            elif nxt is not None:
                out += b_reads(nxt, f - 36, f % RB)
            out.append(mfma(j, m, m % RB, ac))
        return out

    def spread(fill, extra, group=3):
        ng = (len(extra) + group - 1) // group
        if ng == 0:
            return fill
        step = max(1, len(fill) // (ng + 1))
        out, k = [], 0
        for i, e in enumerate(fill):
            out.append(e)
            if (i + 1) % step == 0 and k < ng:
                out += extra[group * k:group * k + group]
                k += 1
        out += extra[group * k:]
        return out

    pitch = 9216
    srd(a, sW, 8, 9, 576 * 9216)
    srd(a, sB, 10, 11, 4608 * 2)
    a(f"s_mul_i32 s{sQc}, s{sS}, 6")
    a(f"s_add_u32 s{sQc}, s{sQc}, s{sCl}")
    a(f"s_mul_i32 s{sDW}, s{sWv}, {8 * pitch}")
    a(f"s_mul_i32 s{sFb}, s{sQc}, 384")
    a(f"s_add_u32 s{sDW}, s{sDW}, s{sFb}")
    a(f"v_mul_u32_u24 v{t0}, {pitch}, v{t0}")
    a(f"v_add_u32 v{vOffB}, v{vOffB}, v{t0}")
    w_prefetch(pitch, sFb, 3)
    emit_list(a, dma_stage(0, pitch))
    a(f"v_lshlrev_b32 v{t2}, 1, v0")
    a(f"buffer_load_ushort v{vCsAcc+2}, v{t2}, s[{sB}:{sB+3}], s{sFb} offen")
    common_late()
    a(f"s_mul_i32 s{sSt}, s{sMb}, 288")
    a(f"s_mul_i32 s{sT}, s{sQc}, 12")
    a(f"s_add_u32 s{sSt}, s{sSt}, s{sT}")
    a(f"s_lshl_b32 s{sSt}, s{sSt}, 10")
    a(f"s_and_b32 s{sT2}, s{sWv}, 3")
    a(f"s_lshr_b32 s{sT}, s{sT2}, 1")
    a(f"s_lshl_b32 s{sT}, s{sT}, 8")
    a(f"s_and_b32 s{sFb}, s{sWv}, 1")
    a(f"s_lshl_b32 s{sFb}, s{sFb}, 5")
    a(f"s_add_u32 s{sT}, s{sT}, s{sFb}")
    a(f"v_lshrrev_b32 v{t0}, 4, v{vLane}")
    a(f"v_lshl_add_u32 v{vCsRd}, v{t0}, 10, v{vCsRd}")
    a(f"v_add_u32 v{vCsRd}, s{sT}, v{vCsRd}")
    a(f"s_lshl_b32 s{sT2}, s{sT2}, 6")
    a(f"s_add_u32 s{sT2}, s{sT2}, {K1_CS}")
    a(f"v_and_b32 v{vCsA}, 15, v{vLane}")
    a(f"v_lshl_add_u32 v{vCsA}, v{vCsA}, 2, s{sT2}")
    a(f"v_lshlrev_b32 v{vE}, 4, v{vE}")
    a(f"v_add_u32 v{vE}, {K1_CS}, v{vE}")
    for i in range(4):
        a(f"v_mov_b32 v{vSel+i}, s{sOnes}")
    a(f"v_mov_b32 v{vC2}, {hx(f2u(GC2))}")
    for r in vS + vSS:
        a(f"v_mov_b32 v{r}, 0")

    own_setup(pitch)

    def stats(n):
        o, k = [], 0
        for r in range(vA + 16 * n, vA + 16 * n + 16):
            o.append(f"v_dot2_f32_bf16 v{vS[k]}, v{r}, s{sOnes}, v{vS[k]}")
            o.append(f"v_dot2_f32_bf16 v{vSS[k]}, v{r}, v{r}, v{vSS[k]}")
            k ^= 1
        return o

    def a_step(n):
        a.wait_tag(f"A{n}")
        emit_list(a, a_reads(n))

    def a_refill(n, nlater=0):
        a.waitcnt(lg=nlater)
        if n + 2 < 9:
            emit_list(a, a_dma(n + 2))
            if n == 5:
                emit_list(a, dma(1, 0, pitch))
        else:
            emit_list(a, dma_own1(pitch, n % 2))

    def cs_rd(m):
        return [f"ds_read_b64_tr_b16 {v(vCsF[m % 2] + 2*z, 2)}, v{vCsRd} offset:{m*4096 + z*512}" for z in range(2)]

    def cs_mf(m):
        return f"{MF16} {v(vCsAcc, 4)}, {v(vSel, 4)}, {v(vCsF[m % 2], 4)}, {'0' if m == 0 else v(vCsAcc, 4)}"

    def colsum():
        out = cs_rd(0) + ["s_nop 0"] + cs_rd(1) + ["s_nop 0"]
        for m in range(18):
            out.append(cs_mf(m))
            if m + 2 < 18:
                r = cs_rd(m + 2)
                if m + 2 >= 9:
                    r = [x.replace(f"offset:{(m+2)*4096 + z*512}", f"offset:{(m+2-9)*4096 + z*512}") for z, x in enumerate(r)]
                if m + 2 == 9:
                    r = [f"v_add_u32 v{vCsRd}, 36864, v{vCsRd}"] + r
                    out += r[:2]
                    out += [r[2], "s_nop 0", "s_nop 0"]
                    continue
                out += r
            else:
                out += ["s_nop 0", "s_nop 0"]
        return out

    def colsum_fin(p):
        d = (K1_STAGE if p % 2 == 0 else -K1_STAGE) - 36864
        return [f"ds_write_b32 v{vCsA}, v{vCsAcc} offset:{p*256}",
                f"v_add_u32 v{vCsRd}, {hx(d)}, v{vCsRd}"]

    T(a)
    for n in range(2):
        a_step(n)
        a_refill(n)
        emit_list(a, stats(n))
    a(f"v_lshlrev_b32 v{t2}, 2, v0")
    a(f"v_add_u32 v{t2}, {K1_CS}, v{t2}")
    a(f"v_lshlrev_b32 v{t3}, 16, v{vCsAcc+2}")
    a(f"ds_write_b32 v{t2}, v{t3} offset:2048")
    a.wait_tag("D0")
    a("s_barrier")
    T(a)
    bm = block_main(0, acc[0], 1)
    emit_list(a, first_reads(0))
    per = []
    cur = []
    for e in bm:
        cur.append(e)
        if e.startswith("v_mfma"):
            per.append(cur)
            cur = []
    done = 0
    cs0 = colsum()
    cs0 = [[x for x in cs0[i:i+3] if x != "s_nop 0"] for i in range(0, len(cs0), 3)]
    for n in range(2, 9):
        a_step(n)
        upto = 4 * n if n > 2 else 8
        for m in range(done, upto):
            emit_list(a, per[m])
            if m == done + 1:
                a_refill(n, nlater=4)
            elif cs0 and m > done + 1:
                emit_list(a, cs0.pop(0))
        done = upto
        st = stats(n)
        emit_list(a, st[:16])
        if cs0:
            emit_list(a, cs0.pop(0))
        emit_list(a, st[16:])
        if n in (4,):
            T(a)
    for m in range(done, 36):
        emit_list(a, per[m])
        if cs0:
            emit_list(a, cs0.pop(0))
    assert not cs0
    T(a)

    def stats_fin():
        o = []
        for (x, y) in ((vS, t0), (vSS, t2)):
            o.append(f"v_add_f32 v{y}, v{x[0]}, v{x[1]}")
            o.append(f"v_mov_b32 v{y+1}, v{y}")
        o.append(f"v_permlane32_swap_b32 v{t0}, v{t1}")
        o.append(f"v_permlane32_swap_b32 v{t2}, v{t3}")
        o.append(f"v_add_f32 v{t0}, v{t0}, v{t1}")
        o.append(f"v_add_f32 v{t2}, v{t2}, v{t3}")
        o.append(f"v_mul_f32 v{t0}, {hx(f2u(1.0/576))}, v{t0}")
        o.append(f"v_mul_f32 v{t2}, {hx(f2u(1.0/576))}, v{t2}")
        o.append(f"v_fma_f32 v{t2}, -v{t0}, v{t0}, v{t2}")
        o.append(f"v_max_f32 v{t2}, 0, v{t2}")
        o.append(f"v_add_f32 v{t2}, {hx(f2u(1e-5))}, v{t2}")
        o.append(f"v_rsq_f32 v{vRstd}, v{t2}")
        o.append(f"v_mul_f32 v{vNrm}, -v{t0}, v{vRstd}")
        return o

    def epi_mlp(j, ac):
        o = []

        def rd(g):
            return [f"ds_read_b128 {v(vCs[g % 2], 4)}, v{vE} offset:{128*j + 32*g}",
                    f"ds_read_b128 {v(vB1[g % 2], 4)}, v{vE} offset:{2048 + 128*j + 32*g}"]
        o += rd(0) + rd(1)
        for g in range(4):
            c, b, x = vCs[g % 2], vB1[g % 2], ac + 4 * g
            o += [f"v_fma_f32 v{c+e}, v{vNrm}, v{c+e}, v{b+e}" for e in range(4)]
            o += [f"v_fma_f32 v{x+e}, v{x+e}, v{vRstd}, v{c+e}" for e in range(4)]
            if g + 2 < 4:
                o += rd(g + 2)
            o += [f"v_mul_f32 v{vT+e}, v{x+e}, v{x+e}" for e in range(4)]
            o += [f"v_fmaak_f32 v{vT+e}, v{vT+e}, v{vC2}, {hx(f2u(GC1))}" for e in range(4)]
            o += [f"v_mul_f32 v{vT+e}, v{vT+e}, v{x+e}" for e in range(4)]
            o += [f"v_exp_f32 v{vT+e}, v{vT+e}" for e in range(4)]
            o += [f"v_add_f32 v{vT+e}, 1.0, v{vT+e}" for e in range(4)]
            o += [f"v_rcp_f32 v{vT+e}, v{vT+e}" for e in range(4)]
            o += [f"v_mul_f32 v{x+e}, v{x+e}, v{vT+e}" for e in range(4)]
            d = ac + 8 * (g // 2) + 2 * (g % 2)
            o += [f"v_cvt_pk_bf16_f32 v{d+e}, v{x+2*e}, v{x+2*e+1}" for e in range(2)]
            if g % 2 == 1:
                o.append((f"buffer_store_dwordx4 {v(ac + 8*(g//2), 4)}, v{vSt}, s[{sWS}:{sWS+3}], s{sSt} offen offset:{(g//2)*1024}{SMOD}", "ST"))
        o.append(f"s_add_u32 s{sSt}, s{sSt}, 2048")
        return o

    def after_arrival(role):
        emit_list(a, stats_fin())
        emit_list(a, colsum_fin(0))
        a.waitcnt(lg=0)
        a("s_barrier")

    CSROLE = int(os.environ.get("CSROLE", "0"))

    def weave(main, csl):
        groups = [[x for x in csl[i:i+3] if x != "s_nop 0"] for i in range(0, len(csl), 3)]
        out, nm = [], 0
        for e in main:
            out.append(e)
            t = e[0] if isinstance(e, tuple) else e
            if t.startswith(MF32):
                nm += 1
                if groups and nm % 3 != 0:
                    out += groups.pop(0)
        for g in groups:
            out += g
        return out

    def interval(role, j):
        extra = []
        if j == 2:
            extra = dma_stage(2, pitch)
        E = epi_mlp(j - 1, acc[(j - 1) % 2])
        csl = colsum() if (j % 2 == 0 and role == CSROLE) else []
        newstage = (j % 2 == 0)
        nxt = j + 1 if (j % 2 == 0 and j < 5) else None
        if SCHEME == "u":
            main = block_main(j, acc[j % 2], nxt)
            if newstage:
                main = first_reads(j) + main
            fill = spread(spread(E, csl), extra)
            emit_list(a, merge(main, fill, budget=22, start=1))
        elif role == 0:
            E2 = spread(E, extra)
            if newstage:
                E2 = E2[:-8] + first_reads(j) + E2[-8:]
            emit_list(a, E2)
            a("s_setprio 1")
            emit_list(a, weave(block_main(j, acc[j % 2], nxt), csl))
            a("s_setprio 0")
        else:
            a("s_setprio 1")
            main = block_main(j, acc[j % 2], None)
            if newstage:
                main = first_reads(j) + main
            emit_list(a, weave(merge(main, extra, budget=3, start=2), csl))
            a("s_setprio 0")
            E2 = E
            if nxt is not None:
                E2 = E2[:-8] + first_reads(nxt) + E2[-8:]
            emit_list(a, E2)
        if csl:
            emit_list(a, colsum_fin(j // 2))
        if j < 5:
            if j == 1:
                a.wait_tag("D1")
            if j == 3:
                a.wait_tag("D2")
            a.waitcnt(lg=(0 if j % 2 == 0 else None))
            a("s_barrier")

    def mlp_rest(role):
        after_arrival(role)
        for j in range(1, 6):
            T(a)
            if role == 1 and str(j) in WBL:
                a(f"s_cmp_lg_u32 s{sIdx}, {j}")
                a(f"s_cbranch_scc1 k1_nowb{j}")
                a(f"s_cmp_lg_u32 s{sWv}, 7")
                a(f"s_cbranch_scc1 k1_nowb{j}")
                a.raw("    buffer_wbl2 sc1")
                a.label(f"k1_nowb{j}")
            interval(role, j)
        T(a)
        emit_list(a, epi_mlp(5, acc[1]))
        T.dump(a, sWS, sWv, 8, vT)
        a("s_endpgm")

    if True:
        a(f"s_cmp_ge_u32 s{sWv}, 4")
        a("s_cbranch_scc1 k1_mlp_r1")
        st_r = a.save()
        nr = T.n
        mlp_rest(0)
        a.label("k1_mlp_r1")
        a.restore(st_r)
        T.n = nr
        mlp_rest(1)

    a.label("k1_qkv")
    a.restore(st_branch)
    T.n = 1
    pitch = 3456
    srd(a, sW, 6, 7, 576 * 3456)
    srd(a, sB, 12, 13, 576 * 2)
    a(f"s_lshl_b32 s{sQc}, s{sS}, 1")
    a(f"s_add_u32 s{sQc}, s{sQc}, s{sCl}")
    a(f"s_sub_u32 s{sQc}, s{sQc}, 6")
    a(f"s_mul_i32 s{sFb}, s{sQc}, 7")
    a(f"s_min_u32 s{sFb}, s{sFb}, 48")
    a(f"s_mul_i32 s{sDW}, s{sWv}, {8 * pitch}")
    a(f"s_lshl_b32 s{sT}, s{sFb}, 6")
    a(f"s_add_u32 s{sDW}, s{sDW}, s{sT}")
    a(f"v_mul_u32_u24 v{t0}, {pitch}, v{t0}")
    a(f"v_add_u32 v{vOffB}, v{vOffB}, v{t0}")
    a(f"s_lshl_b32 s{sScale}, s{sFb}, 6")
    w_prefetch(pitch, sScale, 3)
    emit_list(a, dma_stage(0, pitch))
    common_late()
    a(f"s_mul_i32 s{sSt}, s{sMb}, 108")
    a(f"s_lshl_b32 s{sT}, s{sFb}, 1")
    a(f"s_add_u32 s{sSt}, s{sSt}, s{sT}")
    a(f"s_lshl_b32 s{sSt}, s{sSt}, 10")
    a(f"s_add_u32 s{sSt}, s{sSt}, {hx(QKV_OFF)}")
    vB2 = vCsF[0]
    own_setup(pitch)
    T(a)
    for n in range(2):
        a_step(n)
        a_refill(n)
    a.wait_tag("D0")
    a("s_barrier")
    T(a)
    def rd2(f):
        return b_reads(f % 2, f // 2, f % RB)
    for f in range(RB - 1):
        emit_list(a, rd2(f))
    def step2(f):
        if f + RB - 1 < 72:
            emit_list(a, rd2(f + RB - 1))
        a(mfma(f % 2, f // 2, f % RB, acc[f % 2]))
    done = 0
    for n in range(2, 9):
        a_step(n)
        upto = 8 * n if n > 2 else 16
        for f in range(done, upto):
            step2(f)
            if f == done + 1:
                a_refill(n, nlater=4)
        done = upto
        if n in (4,):
            T(a)
    for f in range(done, 72):
        step2(f)
    T(a)

    def epi_qkv(j, ac):
        o = [f"s_add_u32 s{sT2}, s{sFb}, {j}",
             f"s_cmp_lt_u32 s{sT2}, 18",
             f"s_cselect_b32 s{sScale}, {hx(f2u(QSCALE))}, 1.0"]
        for i in range(16):
            o.append(f"v_mul_f32 v{ac+i}, s{sScale}, v{ac+i}")
        for u in range(2):
            o += [f"v_cvt_pk_bf16_f32 v{ac+8*u+e}, v{ac+8*u+2*e}, v{ac+8*u+2*e+1}" for e in range(4)]
            o.append((f"buffer_store_dwordx4 {v(ac + 8*u, 4)}, v{vSt}, s[{sWS}:{sWS+3}], s{sSt} offen offset:{u*1024}{SMOD}", "ST"))
        o.append(f"s_add_u32 s{sSt}, s{sSt}, 2048")
        return o

    emit_list(a, epi_qkv(0, acc[0]))
    a.wait_tag("D1")
    a("s_barrier")
    emit_list(a, first_reads(2))
    st6 = None
    for j in range(2, 7):
        if j == 6:
            a(f"s_cmp_ge_u32 s{sQc}, 6")
            a("s_cbranch_scc1 k1_tail6")
            st6 = a.save()
            n6 = T.n
        T(a)
        main = block_main(j, acc[j % 2], j + 1 if j < 6 else None)
        fill = epi_qkv(j - 1, acc[(j - 1) % 2])
        if j == 2:
            fill += dma_stage(2, pitch)
        if j == 4:
            fill += dma_stage(3, pitch)
        emit_list(a, merge(main, fill, budget=12, start=1))
        if j == 2:
            a.wait_tag("D2")
            a("s_barrier")
        if j == 3:
            a("s_barrier")
        if j == 4:
            a.wait_tag("D3")
            a("s_barrier")
    emit_list(a, epi_qkv(6, acc[0]))
    T.dump(a, sWS, sWv, 8, vT)
    a("s_endpgm")

    a.label("k1_tail6")
    a.restore(st6)
    emit_list(a, epi_qkv(5, acc[1]))
    T.n = n6
    T.dump(a, sWS, sWv, 8, vT)
    a(f"s_cmp_lg_u32 s{sQc}, 7")
    a("s_cbranch_scc1 k1_flags")
    st7 = a.save()
    a(f"v_lshrrev_b32 v{t0}, 5, v{vLane}")
    a(f"v_lshlrev_b32 v{t0}, 5, v{t0}")
    a(f"v_mov_b32 v{t2}, 0")
    a(f"v_mov_b32 v{t3}, 0")
    gbuf = [acc[0] + 4 * i for i in range(4)] + [vB + 4 * i for i in range(4)] + [vB2 + 4 * i for i in range(4)]
    for base in range(0, 36, 12):
        for i in range(12):
            m = base + i
            a(f"buffer_load_dwordx4 {v(gbuf[i], 4)}, v{t0}, s[{sB}:{sB+3}], 0 offen offset:{64*(m//2) + 16*(m%2)}")
        for i in range(12):
            m = base + i
            for e in range(4):
                r = t2 + (e % 2)
                a(f"v_dot2_f32_bf16 v{r}, v{vA + 4*m + e}, v{gbuf[i] + e}, v{r}")
    a(f"v_add_f32 v{t2}, v{t2}, v{t3}")
    a(f"v_mov_b32 v{t3}, v{t2}")
    a(f"v_permlane32_swap_b32 v{t2}, v{t3}")
    a(f"v_add_f32 v{t2}, v{t2}, v{t3}")
    a(f"v_mul_f32 v{t2}, {hx(f2u(-LOG2E))}, v{t2}")
    a(f"v_exp_f32 v{t2}, v{t2}")
    a(f"v_add_f32 v{t2}, 1.0, v{t2}")
    a(f"v_rcp_f32 v{t2}, v{t2}")
    a(f"v_and_b32 v{t0}, 31, v{vLane}")
    a(f"v_lshlrev_b32 v{t0}, 2, v{t0}")
    a(f"s_lshl_b32 s{sT}, s{sMb}, 7")
    a(f"s_add_u32 s{sT}, s{sT}, {hx(G_OFF)}")
    a(f"buffer_store_dword v{t2}, v{t0}, s[{sWS}:{sWS+3}], s{sT} offen")
    a("s_endpgm")
    a.label("k1_flags")
    a.restore(st7)
    a(f"s_cmp_lg_u32 s{sMb}, 0")
    a("s_cbranch_scc1 k1_end")
    a(f"v_lshlrev_b32 v{t0}, 7, v{vLane}")
    a(f"v_mov_b32 v{t2}, 0")
    a(f"s_mov_b32 s{sT}, {hx(F_OFF)}")
    a(f"buffer_store_dword v{t2}, v{t0}, s[{sWS}:{sWS+3}], s{sT} offen")
    a.label("k1_end")
    a("s_endpgm")
    a.label("k1_code_end")
    return V.hi


HEADER = """; Kernarg layout for this problem (96 bytes, ptrs only, base s[0:1]):
"""


def main(out, kernels=("k1",)):
    a = Asm()
    launches = []
    descs = []
    body = []
    if "k1" in kernels:
        a = Asm()
        nv = gen_k1(a)
        launches.append(f"; @launch kernel=k1_kernel grid=(256,1,1) block=(512,1,1) lds={K1_LDS}")
        descs.append(kernel_desc("k1_kernel", nv))
        body.append(a.text())
        print("k1: vgprs", nv, a.stats, file=sys.stderr)
    import gen2
    if gen2 is not None:
        for kn in kernels:
            if kn == "k1":
                continue
            a = Asm()
            import gen1
            nv, launch = getattr(gen1 if kn == "m1" else gen2, "gen_" + kn)(a)
            launches.append(launch)
            descs.append(kernel_desc(kn + "_kernel", nv))
            body.append(a.text())
            print(kn, ": vgprs", nv, a.stats, file=sys.stderr)
    txt = HEADER + "\n".join(launches) + "\n" + '.amdgcn_target "amdgcn-amd-amdhsa--gfx950"\n.text\n' + "".join(body) + "all_code_end:\n" + "".join(descs)
    open(out, "w").write(txt)


if __name__ == "__main__":
    sys.modules["gen"] = sys.modules["__main__"]
    out = sys.argv[1] if len(sys.argv) > 1 else f"cdna_kernels/{NAME}.s"
    ks = sys.argv[2].split(",") if len(sys.argv) > 2 else ["k1"]
    main(out, ks)
```
